```python
import torch

def _softmax(x, axis=-1):
    return torch.softmax(x, dim=axis)
def _gelu(x):
    return torch.nn.functional.gelu(x, approximate="tanh")
def _silu(x):
    return torch.nn.functional.silu(x)
def _sigmoid(x):
    return torch.sigmoid(x)
def _layernorm(x, axis=-1, eps=1e-5):
    m = x.mean(dim=axis, keepdim=True)
    v = x.var(dim=axis, keepdim=True, unbiased=False)
    return (x - m) / torch.sqrt(v + eps)
def _scatter_add(tgt, idx, src, axis=0):
    return tgt.clone().index_add_(axis, idx, src)
def _segment_sum(src, seg, n):
    out = torch.zeros((n,) + src.shape[1:], dtype=src.dtype)
    return out.index_add_(0, seg, src)
def _pad(x, pw):
    flat = tuple(v for pair in reversed(pw) for v in pair)
    return torch.nn.functional.pad(x, flat)

kernel_name = 'recurrent_scan__softmax_full_mha__glu_gated_geglu__prompt'

def setup_inputs():

    _w = (lambda a: (lambda t: t.to(torch.bfloat16) if t.is_floating_point() else t)(torch.as_tensor(a)))
    def _A_setup():
        B, S, D = 1, 2048, 512
        return {
            "x": _w((lambda *s: torch.randn(*s, dtype=torch.bfloat16) * 0.05)(B, S, D)),
            "wqkv": _w((lambda *s: torch.randn(*s, dtype=torch.bfloat16) * 0.2)(D, 3 * D)),
            "wo": _w((lambda *s: torch.randn(*s, dtype=torch.bfloat16) * 0.2)(D, D)),
        }
    _A_in = _A_setup()

    def _B_setup():
        B, S, Dm, Df = 1, 2048, 512, 1792
        return {
            "x": _w((lambda *s: torch.randn(*s, dtype=torch.bfloat16) * 0.05)(B, S, Dm)),
            "w_gate": _w((lambda *s: torch.randn(*s, dtype=torch.bfloat16) * 0.1)(Dm, Df) * (Dm ** -0.5)),
            "w_up": _w((lambda *s: torch.randn(*s, dtype=torch.bfloat16) * 0.1)(Dm, Df) * (Dm ** -0.5)),
            "w_down": _w((lambda *s: torch.randn(*s, dtype=torch.bfloat16) * 0.1)(Df, Dm) * (Df ** -0.5)),
        }
    _B_in = _B_setup()

    return {
        "A_x": _A_in["x"],
        "A_wqkv": _A_in["wqkv"],
        "A_wo": _A_in["wo"],
        "B_x": _B_in["x"],
        "B_w_gate": _B_in["w_gate"],
        "B_w_up": _B_in["w_up"],
        "B_w_down": _B_in["w_down"],
    }

def reference(A_x, A_wqkv, A_wo, B_x, B_w_gate, B_w_up, B_w_down):
    def _A_ref(x, wqkv, wo):
        B, S, D = x.shape
        H = 32; Dh = D // H
        qkv = (lambda x, *d: x.permute(*d))((x @ wqkv).reshape(B, S, 3, H, Dh), 2, 0, 3, 1, 4)
        q, k, v = qkv[0], qkv[1], qkv[2]
        scale = Dh ** -0.5
        scores = torch.einsum("bhqd,bhkd->bhqk", q, k) * scale
        p = _softmax(scores, axis=-1)
        o = torch.einsum("bhqk,bhkd->bhqd", p, v)
        return (lambda x, *d: x.permute(*d))(o, 0, 2, 1, 3).reshape(B, S, D) @ wo

    def _B_ref(x, w_gate, w_up, w_down):
        g = torch.einsum("bsd,df->bsf", x, w_gate)
        u = torch.einsum("bsd,df->bsf", x, w_up)
        h = _gelu(g) * u
        return torch.einsum("bsf,fd->bsd", h, w_down)

    x = A_x
    xn = _layernorm(x, axis=-1)
    s = _A_ref(xn, A_wqkv, A_wo)
    g = _silu(_B_ref(xn, B_w_gate, B_w_up, B_w_down))
    return x + s * g
```

```python
import re

TRANS = ("v_exp_f32", "v_log_f32", "v_rcp_f32", "v_rsq_f32", "v_sqrt_f32", "v_sin_f32", "v_cos_f32",
         "v_exp_f16", "v_rcp_iflag_f32")

_reg_re = re.compile(r"^(-|abs\()?([vas])(\d+)\)?$")
_rng_re = re.compile(r"^(-)?([vas])\[(\d+):(\d+)\]$")


def regs_of(op):
    op = op.strip()
    m = _reg_re.match(op)
    if m:
        return {(m.group(2), int(m.group(3)))}
    m = _rng_re.match(op)
    if m:
        return {(m.group(2), i) for i in range(int(m.group(3)), int(m.group(4)) + 1)}
    if op == "vcc":
        return {("vcc", 0)}
    if op == "exec":
        return {("exec", 0)}
    if op == "m0":
        return {("m0", 0)}
    if op == "scc":
        return {("scc", 0)}
    return set()


class Ins:
    __slots__ = ("text", "mn", "ops", "wr", "rd", "kind", "passes", "a", "b", "c", "d", "ws", "is_lds_dma")

    def __init__(self, text):
        self.text = text
        t = text.split(";")[0].strip()
        parts = t.split(None, 1)
        self.mn = mn = parts[0]
        rest = parts[1] if len(parts) > 1 else ""
        ops = [o.strip() for o in re.split(r",(?![^\[]*\])", rest)] if rest else []
        mods = []
        if ops:
            sp = ops[-1].split()
            ops[-1] = sp[0] if sp else ""
            mods = sp[1:]
        self.ops = ops
        self.wr = set()
        self.rd = set()
        self.passes = 0
        self.ws = 1
        self.is_lds_dma = False
        self.a = self.b = self.c = self.d = set()
        R = regs_of
        if mn == "s_nop":
            self.kind = "nop"
            self.ws = int(ops[0], 0) + 1
        elif mn.startswith("v_mfma"):
            self.kind = "mfma"
            self.passes = 8 if "32x32" in mn else 4
            self.d, self.a, self.b, self.c = R(ops[0]), R(ops[1]), R(ops[2]), R(ops[3])
            self.wr = set(self.d)
            self.rd = self.a | self.b | self.c
        elif mn.startswith("v_cmp"):
            self.kind = "valu"
            self.wr = R(ops[0])
            for o in ops[1:]:
                self.rd |= R(o)
        elif mn.startswith("v_permlane") and "swap" in mn:
            self.kind = "valu"
            self.wr = R(ops[0]) | R(ops[1])
            self.rd = set(self.wr)
        elif mn.startswith("v_"):
            self.kind = "valu"
            self.wr = R(ops[0])
            start = 1
            if mn in ("v_add_co_u32", "v_addc_co_u32", "v_sub_co_u32"):
                self.wr |= R(ops[1])
                start = 2
            for o in ops[start:]:
                self.rd |= R(o)
            if mn.startswith("v_fmac") or mn.startswith("v_dot2c") or "d16" in mn:
                self.rd |= R(ops[0])
            if mn.startswith("v_cndmask") and len(ops) == 3:
                self.rd |= {("vcc", 0)}
        elif mn.startswith("ds_read") or mn.startswith("ds_bpermute") or mn.startswith("ds_swizzle"):
            self.kind = "ds"
            self.wr = R(ops[0])
            for o in ops[1:]:
                self.rd |= R(o)
        elif mn.startswith("ds_write"):
            self.kind = "ds"
            for o in ops:
                self.rd |= R(o)
        elif mn.startswith("buffer_load") or mn.startswith("global_load"):
            self.kind = "vmem"
            if "lds" in mods or "_lds_" in mn:
                self.is_lds_dma = True
                for o in ops:
                    self.rd |= R(o)
                self.rd |= {("m0", 0)}
            else:
                self.wr = R(ops[0])
                for o in ops[1:]:
                    self.rd |= R(o)
                if "d16" in mn:
                    self.rd |= R(ops[0])
        elif mn.startswith("buffer_store") or mn.startswith("global_store") or mn.startswith("buffer_atomic") or mn.startswith("global_atomic"):
            self.kind = "vmemst"
            for o in ops:
                self.rd |= R(o)
        elif mn.startswith("s_"):
            self.kind = "salu"
            if mn.startswith("s_cmp") or mn.startswith("s_cbranch") or mn in ("s_branch", "s_barrier", "s_waitcnt", "s_endpgm", "s_setprio", "s_sleep"):
                for o in ops:
                    self.rd |= R(o)
            else:
                self.wr = R(ops[0])
                for o in ops[1:]:
                    self.rd |= R(o)
                if "saveexec" in mn:
                    self.wr |= {("exec", 0)}
        else:
            raise ValueError("unknown instr " + text)


def check(seq, name=""):
    errs = []
    n = len(seq)
    for i, c in enumerate(seq):
        if c.kind in ("nop", "salu") and not (c.kind == "salu"):
            continue
        dist = 0
        j = i - 1
        while j >= 0 and dist < 24:
            p = seq[j]

            def need(k, why):
                if dist < k:
                    errs.append(f"{name}[{i}] need {k} have {dist}: {why}\n    P: {p.text}\n    C: {c.text}")

            if p.kind == "valu":
                pw = p.wr
                if c.kind == "mfma" and (pw & c.rd):
                    need(2, "VALU write -> MFMA read")
                if c.kind == "valu":
                    if p.mn in TRANS and c.mn not in TRANS and (pw & c.rd):
                        need(1, "trans -> valu")
                    if c.mn.startswith("v_readfirstlane") or c.mn.startswith("v_readlane"):
                        if pw & c.rd:
                            need(1, "valu -> readlane")
                    if c.mn.startswith("v_permlane") and (pw & c.rd):
                        need(2, "valu -> permlane")
                    sw = {r for r in pw if r[0] in ("s", "vcc")}
                    if sw & c.rd:
                        need(2, "valu writes sgpr -> valu reads")
                if c.kind in ("vmem", "vmemst"):
                    sw = {r for r in pw if r[0] in ("s", "vcc")}
                    if sw & c.rd:
                        need(5, "valu writes sgpr -> vmem reads")
            if p.kind == "mfma":
                big = 12 if p.passes == 8 else 8
                if c.kind == "mfma":
                    if p.d & (c.a | c.b):
                        need(big, "MFMA D -> MFMA A/B")
                    if (p.d & c.c) and p.d != c.c:
                        need(10 if p.passes == 8 else 6, "MFMA D -> MFMA C partial")
                    if (p.d & c.d) and not (p.d == c.c):
                        need(10 if p.passes == 8 else 6, "MFMA D -> MFMA D WAW")
                elif c.kind in ("valu", "ds", "vmem", "vmemst"):
                    if p.d & (c.rd | c.wr):
                        need(big, "MFMA D -> valu/mem access")
                if c.kind == "valu" and (p.c & c.wr):
                    need(7 if p.passes == 8 else 3, "MFMA reads C -> VALU writes (WAR)")
            if p.kind == "salu" and ("m0", 0) in p.wr and c.is_lds_dma:
                need(1, "m0 write -> lds dma")
            if p.kind == "vmemst" and ("x4" in p.mn or "x3" in p.mn) and c.kind == "valu":
                data = regs_of(p.ops[0]) if p.mn.startswith("buffer") else regs_of(p.ops[1])
                if data & c.wr:
                    need(2, "store data WAR")
            dist += p.ws
            j -= 1
    return errs


class Asm:
    def __init__(self):
        self.out = []
        self.seq = []
        self.errs = []

    def raw(self, t):
        self.out.append(t)

    def c(self, t):
        self.out.append("    ; " + t)

    def __call__(self, t):
        for ln in t.strip().split("\n"):
            ln = ln.strip()
            if not ln:
                continue
            ins = Ins(ln)
            self.seq.append(ins)
            self.out.append("    " + ln)

    def label(self, l):
        self.out.append(l + ":")

    def mark(self):
        return len(self.seq)

    def check_loop(self, start, name="loop"):
        body = self.seq[start:]
        self.errs += check(body + body, name)

    def finish(self, name="lin"):
        self.errs += check(self.seq, name)
        self.seq = []
        return self.errs

    def text(self):
        return "\n".join(self.out) + "\n"


def vr(b, n=1):
    return f"v{b}" if n == 1 else f"v[{b}:{b+n-1}]"


def ar(b, n=1):
    return f"a{b}" if n == 1 else f"a[{b}:{b+n-1}]"


def sr(b, n=1):
    return f"s{b}" if n == 1 else f"s[{b}:{b+n-1}]"


def interleave(main, fill, per=None):
    out = []
    n = len(main)
    m = len(fill)
    k = 0
    for i, g in enumerate(main):
        out += g
        tgt = (m * (i + 1) + n - 1) // n if per is None else min(m, per * (i + 1))
        while k < tgt:
            out.append(fill[k])
            k += 1
    while k < m:
        out.append(fill[k])
        k += 1
    return out
```

```python
from asmlib import *

MB = 1 << 20
WS_Q, WS_K, WS_V, WS_O, WS_G, WS_WF, WS_H = 0, 2 * MB, 4 * MB, 6 * MB, 8 * MB, 10 * MB, 16 * MB
WS_SIZE = 32 * MB

SLOT = 28928
UPOFF = 14464
NSLOT = 5
XPITCH = 1040
XW = 32 * XPITCH
SLOT4 = 4 * XW
K1_LDS = SLOT4 + SLOT
def slot_addr(s):
    k = (s + 4) % 5
    return SLOT4 if k == 4 else k * SLOT

QSCALE = 0.25 * 1.4426950408889634


def f2u(f):
    import struct
    return struct.unpack("<I", struct.pack("<f", f))[0]


class VQ:
    def __init__(self):
        self.n = 0
        self.tags = {}

    def issue(self, tag=None, k=1):
        self.n += k
        if tag is not None:
            self.tags[tag] = self.n

    def wait(self, tag):
        return self.n - self.tags[tag]


def gen_k1(a, name, stamps=False):
    st_n = [0]
    def stamp():
        if not stamps:
            return
        k = 72 + 2 * st_n[0]
        st_n[0] += 1
        a(f"s_memtime s[{k}:{k+1}]")
        a("s_waitcnt lgkmcnt(0)")

    sW, sRB, sCB = 3, 4, 5
    SX, SWQ, SWA, SWS, ST, SWS2 = 8, 12, 16, 24, 28, 32
    sOnes, sMask, sDmaA, sDmaB, sStA, sStB, sTmp, sTmp2, sTmp3 = 36, 37, 38, 39, 54, 55, 56, 57, 58
    sRT = 59
    sQoff, sVoff, sHoff = 60, 61, 62
    vLane, vT0, vT1 = 1, 2, 3
    vXoff = 4
    vA = 5
    vB = 12
    vRA = 13
    vRB = 16
    vL16 = 19
    vVoff = 20
    vR = 22
    vC = 24
    vK1, vK2 = 26, 27
    vTmp = 28
    vW = 44
    vX = 100
    vE = 228
    aM = 0
    aQ = 112

    q = VQ()
    a.raw(f".p2align 8\n.globl {name}\n.type {name},@function\n{name}:")
    a(f"s_cmp_ge_u32 s2, 256")
    a(f"s_cbranch_scc1 {name}_end")
    a("""
    s_load_dwordx4 s[40:43], s[0:1], 0
    s_load_dwordx4 s[44:47], s[0:1], 32
    s_load_dwordx2 s[48:49], s[0:1], 16
    s_load_dwordx2 s[50:51], s[0:1], 48
    s_load_dwordx2 s[52:53], s[0:1], 72
    v_lshrrev_b32 v2, 6, v0
    v_and_b32 v1, 63, v0
    s_nop 0
    v_readfirstlane_b32 s3, v2
    s_lshr_b32 s4, s2, 4
    s_and_b32 s5, s2, 15
    """)
    a(f"s_mov_b32 s{sOnes}, 0x3f803f80")
    a(f"s_mov_b32 s{sMask}, 0xffff0000")
    a(f"s_lshl_b32 s{sRT}, s{sRB}, 2")
    a(f"s_add_u32 s{sRT}, s{sRT}, s{sW}")
    t0, t1, t2, t3 = vTmp, vTmp + 1, vTmp + 2, vTmp + 3
    a(f"v_and_b32 v{t0}, 31, v{vLane}")
    a(f"v_lshrrev_b32 v{t1}, 5, v{vLane}")
    a(f"v_lshlrev_b32 v{vL16}, 4, v{vLane}")
    a(f"s_lshl_b32 s70, s{sRT}, 15")
    a(f"s_mul_i32 s71, s{sW}, {XW}")
    a(f"v_mul_u32_u24 v{vXoff}, {XPITCH}, v{t0}")
    a(f"v_lshl_add_u32 v{vXoff}, v{t1}, 6, v{vXoff}")
    a(f"v_add_u32 v{vXoff}, s71, v{vXoff}")
    a(f"v_lshlrev_b32 v{vT0}, 12, v{t1}")
    a(f"v_lshl_add_u32 v{vT0}, v{t0}, 1, v{vT0}")
    a(f"v_add_u32 v{vT1}, 8192, v{vT0}")
    a(f"v_bfe_u32 v{t2}, v{vLane}, 4, 1")
    a(f"v_lshlrev_b32 v{vVoff}, 16, v{t2}")
    a(f"v_lshl_add_u32 v{vVoff}, v{t1}, 8, v{vVoff}")
    a(f"v_and_b32 v{t2}, 15, v{vLane}")
    a(f"v_lshl_add_u32 v{vVoff}, v{t2}, 4, v{vVoff}")
    a(f"s_and_b32 s{sTmp}, s{sW}, 1")
    a(f"s_mul_i32 s{sTmp}, s{sTmp}, {32*3584}")
    a(f"s_mul_i32 s{sTmp2}, s{sCB}, 224")
    a(f"s_add_u32 s{sTmp}, s{sTmp}, s{sTmp2}")
    for i in range(7):
        a(f"v_add_u32 v{t2}, {i*64}, v{vLane}")
        a(f"v_mul_u32_u24 v{t3}, 4682, v{t2}")
        a(f"v_lshrrev_b32 v{t3}, 16, v{t3}")
        a(f"v_mul_u32_u24 v{vA+i}, 14, v{t3}")
        a(f"v_sub_u32 v{t2}, v{t2}, v{vA+i}")
        a(f"v_mul_u32_u24 v{vA+i}, 3584, v{t3}")
        a(f"v_lshl_add_u32 v{vA+i}, v{t2}, 4, v{vA+i}")
        a(f"v_add_u32 v{vA+i}, s{sTmp}, v{vA+i}")
    a(f"s_lshl_b32 s{sTmp}, s{sW}, 4")
    a(f"v_lshrrev_b32 v{t2}, 2, v{vLane}")
    a(f"v_add_u32 v{t2}, s{sTmp}, v{t2}")
    a(f"v_mul_u32_u24 v{vB}, 3072, v{t2}")
    a(f"v_and_b32 v{t2}, 3, v{vLane}")
    a(f"v_lshl_add_u32 v{vB}, v{t2}, 4, v{vB}")
    a(f"s_lshl_b32 s{sTmp}, s{sCB}, 6")
    a(f"v_add_u32 v{vB}, s{sTmp}, v{vB}")
    a(f"v_bfe_u32 v{t2}, v{vLane}, 2, 2")
    a(f"v_lshl_add_u32 v{t2}, v{t1}, 5, v{t2}")
    a(f"v_and_b32 v{t3}, 3, v{vLane}")
    a(f"v_bfe_u32 v{t0}, v{vLane}, 4, 1")
    a(f"v_mul_u32_u24 v{vRA}, 224, v{t2}")
    a(f"v_lshl_add_u32 v{vRA}, v{t3}, 3, v{vRA}")
    a(f"v_mul_u32_u24 v{vRB}, {UPOFF}, v{t0}")
    a(f"v_add_u32 v{vRA}, v{vRA}, v{vRB}")
    a(f"v_add_u32 v{vRA+1}, {2*SLOT}, v{vRA}")
    a(f"v_add_u32 v{vRA+2}, {SLOT4}, v{vRA}")
    a(f"v_lshlrev_b32 v{vRB}, 6, v{t2}")
    a(f"v_lshl_add_u32 v{vRB}, v{t3}, 3, v{vRB}")
    a(f"v_lshl_add_u32 v{vRB}, v{t0}, 5, v{vRB}")
    a(f"v_add_u32 v{vRB+1}, {2*SLOT}, v{vRB}")
    a(f"v_add_u32 v{vRB+2}, {SLOT4}, v{vRB}")
    a(f"v_mov_b32 v{vK1}, {hex(f2u(-2*0.7978845608028654*1.4426950408889634))}")
    a(f"v_mov_b32 v{vK2}, {hex(f2u(-2*0.7978845608028654*1.4426950408889634*0.044715))}")
    a(f"s_lshr_b32 s{sTmp}, s{sW}, 1")
    a(f"s_mul_i32 s{sDmaA}, s{sTmp}, {UPOFF}")
    a(f"s_and_b32 s{sTmp}, s{sW}, 1")
    a(f"s_mul_i32 s{sTmp}, s{sTmp}, 7168")
    a(f"s_add_u32 s{sDmaA}, s{sDmaA}, s{sTmp}")
    a(f"s_lshl_b32 s{sDmaB}, s{sW}, 10")
    a("s_waitcnt lgkmcnt(0)")
    def srd(d, lo, size):
        a(f"s_mov_b32 s{d}, s{lo}")
        a(f"s_and_b32 s{d+1}, s{lo+1}, 0xffff")
        a(f"s_mov_b32 s{d+2}, {size}")
        a(f"s_mov_b32 s{d+3}, 0x00020000")
    srd(SX, 40, 2048 * 1024)
    srd(SWQ, 42, 512 * 3072)
    srd(SWS, 52, WS_SIZE)
    a(f"s_cmp_lt_u32 s{sW}, 2")
    a(f"s_cselect_b32 s{SWA}, s44, s46")
    a(f"s_cselect_b32 s{SWA+1}, s45, s47")
    a(f"s_and_b32 s{SWA+1}, s{SWA+1}, 0xffff")
    a(f"s_mov_b32 s{SWA+2}, {512*3584}")
    a(f"s_mov_b32 s{SWA+3}, 0x00020000")

    stamp()
    vTD = vW
    a(f"s_lshl_b32 s{sTmp}, s2, 2")
    a(f"s_add_u32 s{sTmp}, s{sTmp}, s{sW}")
    sTb = 63
    a(f"s_mov_b32 s68, {1792*1024}")
    a(f"s_mov_b32 s69, {512*1024}")
    for rr in range(3):
        a(f"s_add_u32 s{sTmp2}, s{sTmp}, {rr*1024}")
        a(f"s_lshr_b32 s{sTmp3}, s{sTmp2}, 4")
        a(f"s_and_b32 s{sTmp2}, s{sTmp2}, 15")
        a(f"s_mul_i32 s{sTb+rr}, s{sTmp2}, 144")
        a(f"s_add_u32 s{sTb+rr}, s{sTb+rr}, s{sTmp3}")
        a(f"s_lshl_b32 s{sTb+rr}, s{sTb+rr}, 10")
        a(f"s_add_u32 s{sTb+rr}, s{sTb+rr}, {WS_WF}")
        a(f"s_cmp_lt_u32 s{sTmp3}, 112")
        a(f"s_cselect_b32 s{ST}, s50, s48")
        a(f"s_cselect_b32 s{ST+1}, s51, s49")
        a(f"s_cselect_b32 s{ST+2}, s68, s69")
        a(f"s_cselect_b32 s66, 0, 112")
        a(f"s_and_b32 s{ST+1}, s{ST+1}, 0xffff")
        a(f"s_mov_b32 s{ST+3}, 0x00020000")
        a(f"s_sub_u32 s{sTmp3}, s{sTmp3}, s66")
        a(f"s_lshl_b32 s{sTmp3}, s{sTmp3}, 14")
        a(f"s_lshl_b32 s{sTmp2}, s{sTmp2}, 6")
        a(f"s_add_u32 s{sTmp3}, s{sTmp3}, s{sTmp2}")
        for j in range(8):
            vo = vT0 if j < 4 else vT1
            a(f"buffer_load_ushort v{vTD+12+8*rr+j}, v{vo}, s[{ST}:{ST+3}], s{sTmp3} offen offset:{(j%4)*1024}")
            q.issue()
    a(f"s_cmp_lt_u32 s{sTmp}, 256")
    a(f"s_mov_b32 s{SWS2}, s{SWS}")
    a(f"s_mov_b32 s{SWS2+1}, s{SWS+1}")
    a(f"s_cselect_b32 s{SWS2+2}, {WS_SIZE}, 0")
    a(f"s_mov_b32 s{SWS2+3}, 0x00020000")

    for r in range(32):
        a(f"s_add_u32 m0, s71, {r*XPITCH}")
        a(f"s_add_u32 s{sTmp2}, s70, {r*1024}")
        a(f"buffer_load_dwordx4 v{vL16}, s[{SX}:{SX+3}], s{sTmp2} offen lds")
        q.issue("x")

    def dma_stage(s):
        out = []
        slot = slot_addr(s)
        if s < 8:
            out.append(f"s_mov_b32 s{sStA}, {s*64*3584}")
            for i in range(7):
                out.append(f"s_add_u32 m0, s{sDmaA}, {slot + i*1024}")
                out.append("s_nop 0")
                out.append(f"buffer_load_dwordx4 v{vA+i}, s[{SWA}:{SWA+3}], s{sStA} offen lds")
        else:
            sp = s - 8
            for t in range(3):
                out.append(f"s_mov_b32 s{sStB}, {sp*64*3072 + t*1024}")
                out.append(f"s_add_u32 m0, s{sDmaB}, {slot + t*4096}")
                out.append("s_nop 0")
                out.append(f"buffer_load_dwordx4 v{vB}, s[{SWQ}:{SWQ+3}], s{sStB} offen lds")
        return out

    def dma_count(s):
        return 7 if s < 8 else 3

    for s in range(1):
        for l in dma_stage(s):
            a(l)
        q.issue(("st", s), dma_count(s))

    a(f"s_waitcnt vmcnt({q.wait('x')})")
    stamp()
    vOne = vE
    for r in range(4):
        a(f"v_mov_b32 v{vOne+r}, s{sOnes}")
    for g in range(8):
        for i in range(4):
            f = 4 * g + i
            a(f"ds_read_b128 v[{vX+4*f}:{vX+4*f+3}], v{vXoff} offset:{g*128+i*16}")
    for rr in range(3):
        sd = SWS2 if rr == 2 else SWS
        for j in range(4):
            a(f"v_lshl_or_b32 v{vTD+4*rr+j}, v{vTD+12+8*rr+2*j+1}, 16, v{vTD+12+8*rr+2*j}")
        a(f"buffer_store_dwordx4 v[{vTD+4*rr}:{vTD+4*rr+3}], v{vL16}, s[{sd}:{sd+3}], s{sTb+rr} offen")
        q.issue()
    S1, S2 = vTmp, vTmp + 4
    for f in range(32):
        a(f"s_waitcnt lgkmcnt({min(15, 31 - f)})")
        cc = "0" if f == 0 else f"a[{aQ}:{aQ+15}]"
        a(f"v_mfma_f32_32x32x16_bf16 a[{aQ}:{aQ+15}], v[{vOne}:{vOne+3}], v[{vX+4*f}:{vX+4*f+3}], {cc}")
        for r in range(4 * f, 4 * f + 4):
            k = r % 4
            c2 = "0" if r < 4 else f"v{S2+k}"
            a(f"v_dot2_f32_bf16 v{S2+k}, v{vX+r}, v{vX+r}, {c2}")
    a("s_barrier")
    a(f"""
    s_nop 7
    v_add_f32 v{S2}, v{S2}, v{S2+1}
    v_add_f32 v{S2+2}, v{S2+2}, v{S2+3}
    v_accvgpr_read_b32 v{S1}, a{aQ}
    v_add_f32 v{S2}, v{S2}, v{S2+2}
    s_nop 0
    v_mov_b32 v{S2+1}, v{S2}
    s_nop 1
    v_permlane32_swap_b32 v{S2}, v{S2+1}
    s_nop 1
    v_add_f32 v{S2}, v{S2}, v{S2+1}
    v_mul_f32 v{S1}, {hex(f2u(1/512))}, v{S1}
    v_mul_f32 v{S2}, {hex(f2u(1/512))}, v{S2}
    v_fma_f32 v{S2}, -v{S1}, v{S1}, v{S2}
    v_max_f32 v{S2}, 0, v{S2}
    v_cvt_pk_bf16_f32 v{S1+2}, v{S1}, v{S2}
    v_lshlrev_b32 v{S1}, 16, v{S1+2}
    v_and_b32 v{S2}, s{sMask}, v{S1+2}
    v_add_f32 v{S2}, {hex(f2u(1e-5))}, v{S2}
    v_cvt_pk_bf16_f32 v{S2}, v{S2}, v{S2}
    v_and_b32 v{S2}, s{sMask}, v{S2}
    v_sqrt_f32 v{S2}, v{S2}
    s_nop 0
    v_cvt_pk_bf16_f32 v{S2}, v{S2}, v{S2}
    v_and_b32 v{S2}, s{sMask}, v{S2}
    v_rcp_f32 v{vR}, v{S2}
    s_nop 0
    v_mov_b32 v{vR+1}, v{vR}
    v_mul_f32 v{vC}, -v{S1}, v{vR}
    v_mov_b32 v{vC+1}, v{vC}
    """)

    def norm_frag(f):
        out = []
        for r in range(4):
            x = vX + 4 * f + r
            tt = vTmp + 2 * r
            out.append(f"v_lshlrev_b32 v{tt}, 16, v{x}")
            out.append(f"v_and_b32 v{tt+1}, s{sMask}, v{x}")
        for r in range(4):
            tt = vTmp + 2 * r
            out.append(f"v_fma_f32 v{tt}, v{tt}, v{vR}, v{vC}")
            out.append(f"v_fma_f32 v{tt+1}, v{tt+1}, v{vR}, v{vC}")
        for r in range(4):
            x = vX + 4 * f + r
            tt = vTmp + 2 * r
            out.append(f"v_cvt_pk_bf16_f32 v{x}, v{tt}, v{tt+1}")
        return out

    def reads(n):
        out = []
        s, i = n // 4, n % 4
        slot = (s + 4) % NSLOT
        base = slot // 2
        off0 = (slot % 2) * SLOT
        buf = vW + (n % 2) * 28
        if s < 8:
            for t in range(7):
                pr = []
                for qq in range(2):
                    off = off0 + (8 * i + 4 * qq) * 224 + t * 32
                    pr.append(f"ds_read_b64_tr_b16 v[{buf+4*t+2*qq}:{buf+4*t+2*qq+1}], v{vRA+base} offset:{off}")
                out.append(pr)
        else:
            for t in range(3):
                pr = []
                for qq in range(2):
                    off = off0 + t * 4096 + (8 * i + 4 * qq) * 64
                    pr.append(f"ds_read_b64_tr_b16 v[{buf+4*t+2*qq}:{buf+4*t+2*qq+1}], v{vRB+base} offset:{off}")
                out.append(pr)
        return out

    stamp()
    for l in norm_frag(0):
        a(l)
    a(f"s_waitcnt vmcnt({q.wait(('st',0))})")
    a("s_barrier")
    stamp()
    for pr in reads(0):
        for l in pr:
            a(l)

    def mlp_epi(t):
        out = []
        H = vE + 12
        for grp in range(2):
            G, U, X = vE, vE + 4, vE + 8
            rs = range(4)
            for r in rs:
                out.append(f"v_accvgpr_read_b32 v{G+r}, a{aM+16*t+4*grp+r}")
            for r in rs:
                out.append(f"v_accvgpr_read_b32 v{U+r}, a{aM+16*t+8+4*grp+r}")
            for r in rs:
                out.append(f"v_mul_f32 v{X+r}, v{G+r}, v{G+r}")
            for r in rs:
                out.append(f"v_fma_f32 v{X+r}, v{X+r}, v{vK2}, v{vK1}")
            for r in rs:
                out.append(f"v_mul_f32 v{X+r}, v{G+r}, v{X+r}")
            for r in rs:
                out.append(f"v_exp_f32 v{X+r}, v{X+r}")
            for r in rs:
                out.append(f"v_mul_f32 v{U+r}, v{G+r}, v{U+r}")
            for r in rs:
                out.append(f"v_add_f32 v{X+r}, 1.0, v{X+r}")
            for r in rs:
                out.append(f"v_rcp_f32 v{X+r}, v{X+r}")
            out.append("s_nop 0")
            for r in rs:
                out.append(f"v_mul_f32 v{H+4*grp+r}, v{U+r}, v{X+r}")
        P = vE + 20 + 4 * (t % 2)
        for r in range(4):
            out.append(f"v_cvt_pk_bf16_f32 v{P+r}, v{H+2*r}, v{H+2*r+1}")
        out.append(f"buffer_store_dwordx4 v[{P}:{P+3}], v{vL16}, s[{SWS}:{SWS+3}], s{sHoff} offen offset:{t*1024}")
        return out

    a(f"s_mul_i32 s{sHoff}, s{sRT}, 112")
    a(f"s_mul_i32 s{sTmp}, s{sCB}, 7")
    a(f"s_add_u32 s{sHoff}, s{sHoff}, s{sTmp}")
    a(f"s_lshl_b32 s{sHoff}, s{sHoff}, 10")
    a(f"s_add_u32 s{sHoff}, s{sHoff}, {WS_H}")
    sHoff2 = 67
    a(f"s_add_u32 s{sHoff2}, s{sHoff}, 4096")

    epi = []
    for t in range(7):
        e = mlp_epi(t)
        if t >= 4:
            e[-1] = e[-1].replace(f"s{sHoff} offen offset:{t*1024}", f"s{sHoff2} offen offset:{(t-4)*1024}")
        epi += e
    nB = 32 * 3
    epi_pos = 0

    for n in range(64):
        s, i = n // 4, n % 4
        nt = 7 if s < 8 else 3
        buf = vW + (n % 2) * 28
        nxt = reads(n + 1) if n + 1 < 64 else None
        pre = []
        post_dma = []
        if i == 3 and s + 1 < 16:
            pre.append(f"s_waitcnt vmcnt({q.wait(('st', s+1))})")
            pre.append("s_barrier")
            if s + 4 < 16:
                post_dma = dma_stage(s + 4)
                post_tag = s + 4
        if s == 0 and i < 3:
            post_dma = dma_stage(i + 1)
            post_tag = i + 1
        if n in (8, 16, 32, 48):
            stamp()
        for l in pre:
            a(l)
        fill = []
        if s < 8 and n + 1 < 32:
            fill = norm_frag(n + 1)
        nrd_next = 0 if nxt is None else len(nxt)
        dma_groups = []
        if post_dma:
            cur = []
            for l in post_dma:
                cur.append(l)
                if l.startswith("buffer_load"):
                    dma_groups.append(cur)
                    cur = []
        fi = 0
        for t in range(nt):
            issued_next = min(t, nrd_next) if nxt is not None else 0
            if t % 2 == 0:
                tl = min(t + 1, nt - 1)
                cnt = 2 * (nt - 1 - tl) + 2 * issued_next
                a(f"s_waitcnt lgkmcnt({cnt})")
            X = f"v[{vX+4*(n%32)}:{vX+4*(n%32)+3}]"
            Wf = f"v[{buf+4*t}:{buf+4*t+3}]"
            if s < 8:
                acc = f"a[{aM+16*t}:{aM+16*t+15}]"
                cc = "0" if n == 0 else acc
                a(f"v_mfma_f32_32x32x16_bf16 {acc}, {Wf}, {X}, {cc}")
            else:
                acc = f"a[{aQ+16*t}:{aQ+16*t+15}]"
                cc = "0" if n == 32 else acc
                if t < 2:
                    a(f"v_mfma_f32_32x32x16_bf16 {acc}, {Wf}, {X}, {cc}")
                else:
                    a(f"v_mfma_f32_32x32x16_bf16 {acc}, {X}, {Wf}, {cc}")
            if nxt is not None and t < nrd_next:
                for l in nxt[t]:
                    a(l)
            if dma_groups:
                per = (len(dma_groups) + (nt - t) - 1) // (nt - t)
                for _ in range(per):
                    if dma_groups:
                        for l in dma_groups.pop(0):
                            a(l)
            if fill:
                tgt = min(len(fill), (len(fill) * (t + 1) + nt - 2) // (nt - 1))
                while fi < tgt:
                    a(fill[fi]); fi += 1
            if s >= 8:
                idx = (n - 32) * 3 + t
                if idx >= 4:
                    tgt = (len(epi) * (idx - 3) + (nB - 8) - 1) // (nB - 8)
                    tgt = min(tgt, len(epi))
                    while epi_pos < tgt:
                        l = epi[epi_pos]
                        a(l)
                        if l.startswith("buffer_store"):
                            q.issue()
                        epi_pos += 1
        if post_dma:
            q.issue(("st", post_tag), dma_count(post_tag))
    assert epi_pos == len(epi)

    stamp()
    a(f"s_lshl_b32 s{sQoff}, s{sCB}, 7")
    a(f"s_add_u32 s{sQoff}, s{sQoff}, s{sRT}")
    a(f"s_lshl_b32 s{sQoff}, s{sQoff}, 10")
    a(f"s_add_u32 s{sVoff}, s{sQoff}, {WS_V}")
    a(f"s_add_u32 s{sTmp}, s{sQoff}, 65536")
    a(f"s_add_u32 s{sTmp2}, s{sQoff}, {WS_K}")
    a(f"s_add_u32 s{sTmp3}, s{sQoff}, {WS_K+65536}")
    a(f"s_mov_b32 s66, {hex(f2u(QSCALE))}")
    a("s_nop 7")
    T = vTmp
    for t in range(3):
        for half in range(2):
            for r in range(8):
                a(f"v_accvgpr_read_b32 v{T+r}, a{aQ+16*t+8*half+r}")
            if t == 0:
                for r in range(8):
                    a(f"v_mul_f32 v{T+r}, s66, v{T+r}")
            P = vE + 4 * ((2 * t + half) % 4)
            for r in range(4):
                a(f"v_cvt_pk_bf16_f32 v{P+r}, v{T+2*r}, v{T+2*r+1}")
            if t == 0:
                so = sQoff if half == 0 else sTmp
                a(f"buffer_store_dwordx4 v[{P}:{P+3}], v{vL16}, s[{SWS}:{SWS+3}], s{so} offen")
            elif t == 1:
                so = sTmp2 if half == 0 else sTmp3
                a(f"buffer_store_dwordx4 v[{P}:{P+3}], v{vL16}, s[{SWS}:{SWS+3}], s{so} offen")
            else:
                a(f"buffer_store_dwordx4 v[{P}:{P+3}], v{vVoff}, s[{SWS}:{SWS+3}], s{sVoff} offen offset:{half*512}")
    if stamps:
        stamp()
        a("s_load_dwordx2 s[40:41], s[0:1], 64")
        a("s_waitcnt lgkmcnt(0)")
        a("s_mov_b32 s42, 256")
        a("s_mov_b32 s43, 0x00020000")
        a("s_cmp_lg_u32 s2, 0")
        a(f"s_cbranch_scc1 {name}_end")
        a("s_cmp_lg_u32 s3, 0")
        a(f"s_cbranch_scc1 {name}_end")
        a("v_mov_b32 v1, 0")
        for i in range(st_n[0]):
            a(f"v_mov_b32 v2, s{72+2*i}")
            a(f"buffer_store_dword v2, v1, s[40:43], 0 offen offset:{4*i}")
    a.label(f"{name}_end")
    a("s_endpgm")
    errs = a.finish(name)
    desc = f"""
.amdhsa_kernel {name}
  .amdhsa_next_free_vgpr 416
  .amdhsa_next_free_sgpr 100
  .amdhsa_accum_offset 256
  .amdhsa_group_segment_fixed_size 0
  .amdhsa_kernarg_size 80
  .amdhsa_user_sgpr_count 2
  .amdhsa_user_sgpr_kernarg_segment_ptr 1
  .amdhsa_system_sgpr_workgroup_id_x 1
.end_amdhsa_kernel
"""
    return desc, K1_LDS
```

```python
from asmlib import *
from k1 import WS_Q, WS_K, WS_V, WS_O, WS_G, WS_WF, WS_H, WS_SIZE, f2u

K2_LDS = 131072
OFFSET = 40.0
T0 = 8


def gen_k2(a, name, stamps=False):
    sW, sHead, sQB = 3, 4, 5
    SWS = 8
    sTmp, sTmp2, sTmp3 = 12, 13, 14
    sMaskV = 16
    sLoop = 18
    sOoff = 19
    sA, sB = 20, 21
    vLane, vL16, vKa, vVa = 1, 2, 3, 4
    vT = 5
    vQ = 12
    vK = 16
    vV = 24
    vP = 40
    vS = 48
    vC = 80
    vO = 96
    gA = 12
    gB = 44
    gAcc = 80
    gT = 96

    a.raw(f".p2align 8\n.globl {name}\n.type {name},@function\n{name}:")
    a("s_cmp_ge_u32 s2, 256")
    a(f"s_cbranch_scc1 {name}_end")
    a("""
    s_load_dwordx2 s[6:7], s[0:1], 72
    v_lshrrev_b32 v2, 6, v0
    v_and_b32 v1, 63, v0
    s_nop 0
    v_readfirstlane_b32 s3, v2
    s_and_b32 s4, s2, 31
    s_lshr_b32 s5, s2, 5
    """)
    a(f"v_lshlrev_b32 v{vL16}, 4, v{vLane}")
    a("s_waitcnt lgkmcnt(0)")
    a(f"s_mov_b32 s{SWS}, s6")
    a(f"s_and_b32 s{SWS+1}, s7, 0xffff")
    a(f"s_mov_b32 s{SWS+2}, {WS_SIZE}")
    a(f"s_mov_b32 s{SWS+3}, 0x00020000")
    a(f"s_cmp_ge_u32 s{sW}, 8")
    a(f"s_cbranch_scc1 {name}_gemm")

    a(f"s_lshl_b32 s{sTmp}, s{sHead}, 16")
    a(f"s_lshl_b32 s{sTmp2}, s{sW}, 10")
    a(f"s_add_u32 s{sTmp}, s{sTmp}, s{sTmp2}")
    a(f"s_add_u32 s{sTmp3}, s{sTmp}, {WS_K}")
    a(f"s_mov_b32 m0, s{sTmp2}")
    a("s_nop 0")
    a(f"buffer_load_dwordx4 v{vL16}, s[{SWS}:{SWS+3}], s{sTmp3} offen lds")
    a(f"s_add_u32 s{sTmp3}, s{sTmp}, {WS_V}")
    a(f"s_add_u32 m0, s{sTmp2}, 65536")
    a("s_nop 0")
    a(f"buffer_load_dwordx4 v{vL16}, s[{SWS}:{SWS+3}], s{sTmp3} offen lds")
    a(f"s_lshl_b32 s{sOoff}, s{sQB}, 3")
    a(f"s_add_u32 s{sOoff}, s{sOoff}, s{sW}")
    a(f"s_lshl_b32 s{sTmp3}, s{sHead}, 6")
    a(f"s_add_u32 s{sTmp3}, s{sTmp3}, s{sOoff}")
    a(f"s_lshl_b32 s{sTmp3}, s{sTmp3}, 10")
    a(f"buffer_load_dwordx4 v[{vQ}:{vQ+3}], v{vL16}, s[{SWS}:{SWS+3}], s{sTmp3} offen")
    for i in range(1, 8):
        a(f"s_add_u32 s{sTmp3}, s{sTmp}, {WS_K + i*8192}")
        a(f"s_add_u32 m0, s{sTmp2}, {i*8192}")
        a("s_nop 0")
        a(f"buffer_load_dwordx4 v{vL16}, s[{SWS}:{SWS+3}], s{sTmp3} offen lds")
        a(f"s_add_u32 s{sTmp3}, s{sTmp}, {WS_V + i*8192}")
        a(f"s_add_u32 m0, s{sTmp2}, {65536 + i*8192}")
        a("s_nop 0")
        a(f"buffer_load_dwordx4 v{vL16}, s[{SWS}:{SWS+3}], s{sTmp3} offen lds")
    a(f"s_lshl_b32 s{sOoff}, s{sOoff}, 5")
    a(f"s_add_u32 s{sOoff}, s{sOoff}, s{sHead}")
    a(f"s_lshl_b32 s{sOoff}, s{sOoff}, 10")
    a(f"s_add_u32 s{sOoff}, s{sOoff}, {WS_O}")
    a(f"s_mov_b32 s{sMaskV}, 0x0000ffff")
    a(f"s_mov_b32 s{sMaskV+1}, 0x0000ffff")
    a(f"v_mov_b32 v{vKa}, v{vL16}")
    a(f"v_lshrrev_b32 v{vT}, 5, v{vLane}")
    a(f"v_and_b32 v{vT+1}, 15, v{vLane}")
    a(f"v_lshlrev_b32 v{vVa}, 8, v{vT}")
    a(f"v_lshl_add_u32 v{vVa}, v{vT+1}, 4, v{vVa}")
    a(f"v_add_u32 v{vVa}, 65536, v{vVa}")
    a(f"v_and_b32 v{vT}, 31, v{vLane}")
    a(f"v_and_b32 v{vT+1}, 27, v{vT}")
    a(f"v_mov_b32 v{vT+2}, 0x3f803f80")
    a(f"v_cmp_eq_u32 vcc, 16, v{vT+1}")
    a("s_nop 1")
    a(f"v_cndmask_b32 v{vT}, 0, v{vT+2}, vcc")
    for r in range(16):
        a(f"v_mov_b32 v{vV+r}, v{vT}")
    for r in range(16):
        a(f"v_mov_b32 v{vO+r}, 0")
    a("s_waitcnt vmcnt(14)")
    a("s_barrier")

    mx = vT
    for t in range(T0):
        a(f"ds_read_b128 v[{vK+4*(t%2)}:{vK+4*(t%2)+3}], v{vKa} offset:{t*1024}")
        if t >= 1:
            pass
        a("s_waitcnt lgkmcnt(0)")
        S = vS + 16 * (t % 2)
        a(f"v_mfma_f32_32x32x16_bf16 v[{S}:{S+15}], v[{vK+4*(t%2)}:{vK+4*(t%2)+3}], v[{vQ}:{vQ+3}], 0")
        if t >= 1:
            Sp = vS + 16 * ((t - 1) % 2)
            a("s_nop 8")
            for r in range(0, 16, 2):
                c = f"v{Sp+r}" if (t == 1 and r == 0) else f"v{mx}"
                a(f"v_max3_f32 v{mx}, v{Sp+r}, v{Sp+r+1}, {c}")
    Sp = vS + 16 * ((T0 - 1) % 2)
    a("s_nop 7")
    a("s_nop 3")
    for r in range(0, 16, 2):
        a(f"v_max3_f32 v{mx}, v{Sp+r}, v{Sp+r+1}, v{mx}")
    a(f"""
    s_nop 0
    v_mov_b32 v{mx+1}, v{mx}
    s_nop 1
    v_permlane32_swap_b32 v{mx}, v{mx+1}
    s_nop 1
    v_max_f32 v{mx}, v{mx}, v{mx+1}
    v_add_f32 v{mx}, {hex(f2u(OFFSET))}, v{mx}
    v_sub_f32 v{mx}, 0, v{mx}
    """)
    a(f"ds_read_b128 v[{vK}:{vK+3}], v{vKa} offset:0")
    a(f"ds_read_b128 v[{vK+4}:{vK+7}], v{vKa} offset:1024")
    a(f"s_mov_b64 exec, s[{sMaskV}:{sMaskV+1}]")
    a(f"ds_read_b128 v[{vV}:{vV+3}], v{vVa} offset:0")
    a(f"ds_read_b128 v[{vV+4}:{vV+7}], v{vVa} offset:512")
    a("s_mov_b64 exec, -1")
    for r in range(16):
        a(f"v_mov_b32 v{vC+r}, v{mx}")
    a("s_nop 0")
    a("s_waitcnt lgkmcnt(0)")
    a(f"v_mfma_f32_32x32x16_bf16 v[{vS}:{vS+15}], v[{vK}:{vK+3}], v[{vQ}:{vQ+3}], v[{vC}:{vC+15}]")
    a("s_nop 7")
    a("s_nop 3")

    def tile(j, barrier=False):
        cur, nxt = j % 2, 1 - j % 2
        S = vS + 16 * cur
        Sn = vS + 16 * nxt
        if barrier:
            a("s_waitcnt vmcnt(0)")
            a("s_barrier")
        a("s_waitcnt lgkmcnt(0)")
        a(f"v_mfma_f32_32x32x16_bf16 v[{Sn}:{Sn+15}], v[{vK+4*nxt}:{vK+4*nxt+3}], v[{vQ}:{vQ+3}], v[{vC}:{vC+15}]")
        a(f"ds_read_b128 v[{vK+4*cur}:{vK+4*cur+3}], v{vKa} offset:{(j+2)*1024}")
        a(f"s_mov_b64 exec, s[{sMaskV}:{sMaskV+1}]")
        a(f"ds_read_b128 v[{vV+8*nxt}:{vV+8*nxt+3}], v{vVa} offset:{(j+1)*1024}")
        a(f"ds_read_b128 v[{vV+8*nxt+4}:{vV+8*nxt+7}], v{vVa} offset:{(j+1)*1024+512}")
        a("s_mov_b64 exec, -1")
        for r in range(8):
            a(f"v_exp_f32 v{S+r}, v{S+r}")
        for r in range(4):
            a(f"v_cvt_pk_bf16_f32 v{vP+r}, v{S+2*r}, v{S+2*r+1}")
        for r in range(8, 10):
            a(f"v_exp_f32 v{S+r}, v{S+r}")
        a(f"v_mfma_f32_32x32x16_bf16 v[{vO}:{vO+15}], v[{vV+8*cur}:{vV+8*cur+3}], v[{vP}:{vP+3}], v[{vO}:{vO+15}]")
        for r in range(10, 16):
            a(f"v_exp_f32 v{S+r}, v{S+r}")
        for r in range(4, 8):
            a(f"v_cvt_pk_bf16_f32 v{vP+r}, v{S+2*r}, v{S+2*r+1}")
        a("s_nop 1")
        a(f"v_mfma_f32_32x32x16_bf16 v[{vO}:{vO+15}], v[{vV+8*cur+4}:{vV+8*cur+7}], v[{vP+4}:{vP+7}], v[{vO}:{vO+15}]")

    for j in range(8):
        tile(j, barrier=(j == 5))
    a(f"v_add_u32 v{vKa}, 8192, v{vKa}")
    a(f"v_add_u32 v{vVa}, 8192, v{vVa}")
    a(f"s_mov_b32 s{sLoop}, 7")
    a.label(f"{name}_aloop")
    m = a.mark()
    for j in range(8):
        tile(j)
    a(f"v_add_u32 v{vKa}, 8192, v{vKa}")
    a(f"v_add_u32 v{vVa}, 8192, v{vVa}")
    a(f"s_sub_u32 s{sLoop}, s{sLoop}, 1")
    a(f"s_cmp_lg_u32 s{sLoop}, 0")
    a(f"s_cbranch_scc1 {name}_aloop")
    a.check_loop(m, name + "_aloop")
    a("s_nop 7")
    a("s_nop 7")
    a(f"v_mov_b32 v{vT}, {hex(f2u(2.0**100))}")
    a(f"v_cmp_lt_f32 vcc, v{vO+8}, v{vT}")
    a("s_nop 1")
    a("s_cmp_eq_u64 vcc, -1")
    a(f"s_cbranch_scc0 {name}_slow")
    a.label(f"{name}_fin")
    a(f"v_rcp_f32 v{vT}, v{vO+8}")
    a("s_nop 0")
    for r in range(8):
        a(f"v_mul_f32 v{vO+r}, v{vO+r}, v{vT}")
    for r in range(4):
        a(f"v_cvt_pk_bf16_f32 v{vP+r}, v{vO+2*r}, v{vO+2*r+1}")
    a(f"buffer_store_dwordx4 v[{vP}:{vP+3}], v{vL16}, s[{SWS}:{SWS+3}], s{sOoff} offen")
    a("s_endpgm")

    a.label(f"{name}_slow")
    mrun, mnew, al = vT, vT + 1, vT + 2
    a(f"v_mov_b32 v{vKa}, v{vL16}")
    a(f"v_add_u32 v{vVa}, {-65536 & 0xffffffff}, v{vVa}")
    a(f"v_mov_b32 v{mrun}, {hex(f2u(-3.0e38))}")
    for r in range(16):
        a(f"v_mov_b32 v{vO+r}, 0")
    a(f"s_mov_b32 s{sLoop}, 64")
    a.label(f"{name}_sloop")
    m = a.mark()
    S = vS
    a(f"ds_read_b128 v[{vK}:{vK+3}], v{vKa}")
    a(f"s_mov_b64 exec, s[{sMaskV}:{sMaskV+1}]")
    a(f"ds_read_b128 v[{vV}:{vV+3}], v{vVa}")
    a(f"ds_read_b128 v[{vV+4}:{vV+7}], v{vVa} offset:512")
    a("s_mov_b64 exec, -1")
    a("s_waitcnt lgkmcnt(0)")
    a(f"v_mfma_f32_32x32x16_bf16 v[{S}:{S+15}], v[{vK}:{vK+3}], v[{vQ}:{vQ+3}], 0")
    a("s_nop 7")
    a("s_nop 7")
    a(f"v_mov_b32 v{mnew}, v{mrun}")
    for r in range(0, 16, 2):
        a(f"v_max3_f32 v{mnew}, v{S+r}, v{S+r+1}, v{mnew}")
    a(f"""
    s_nop 0
    v_mov_b32 v{al}, v{mnew}
    s_nop 1
    v_permlane32_swap_b32 v{mnew}, v{al}
    s_nop 1
    v_max_f32 v{mnew}, v{mnew}, v{al}
    v_sub_f32 v{al}, v{mrun}, v{mnew}
    v_exp_f32 v{al}, v{al}
    v_mov_b32 v{mrun}, v{mnew}
    """)
    for r in range(16):
        a(f"v_sub_f32 v{S+r}, v{S+r}, v{mnew}")
    for r in range(16):
        a(f"v_exp_f32 v{S+r}, v{S+r}")
    for r in range(16):
        a(f"v_mul_f32 v{vO+r}, v{vO+r}, v{al}")
    for r in range(8):
        a(f"v_cvt_pk_bf16_f32 v{vP+r}, v{S+2*r}, v{S+2*r+1}")
    a("s_nop 1")
    a(f"v_mfma_f32_32x32x16_bf16 v[{vO}:{vO+15}], v[{vV}:{vV+3}], v[{vP}:{vP+3}], v[{vO}:{vO+15}]")
    a(f"v_mfma_f32_32x32x16_bf16 v[{vO}:{vO+15}], v[{vV+4}:{vV+7}], v[{vP+4}:{vP+7}], v[{vO}:{vO+15}]")
    a(f"v_add_u32 v{vKa}, 1024, v{vKa}")
    a(f"v_add_u32 v{vVa}, 1024, v{vVa}")
    a("s_nop 7")
    a("s_nop 7")
    a(f"s_sub_u32 s{sLoop}, s{sLoop}, 1")
    a(f"s_cmp_lg_u32 s{sLoop}, 0")
    a(f"s_cbranch_scc1 {name}_sloop")
    a.check_loop(m, name + "_sloop")
    a(f"s_branch {name}_fin")

    a.label(f"{name}_gemm")
    a(f"s_sub_u32 s{sW}, s{sW}, 8")
    a(f"s_lshr_b32 s{sTmp}, s2, 3")
    a(f"s_lshl_b32 s{sTmp}, s{sTmp}, 1")
    a(f"s_lshr_b32 s{sTmp2}, s{sW}, 1")
    a(f"s_add_u32 s{sTmp}, s{sTmp}, s{sTmp2}")
    a(f"s_and_b32 s{sTmp2}, s2, 7")
    a(f"s_lshl_b32 s{sTmp2}, s{sTmp2}, 1")
    a(f"s_and_b32 s{sTmp3}, s{sW}, 1")
    a(f"s_add_u32 s{sTmp2}, s{sTmp2}, s{sTmp3}")
    a(f"s_mul_i32 s{sA}, s{sTmp2}, {144*1024}")
    a(f"s_add_u32 s{sA}, s{sA}, {WS_WF}")
    a(f"s_mul_i32 s{sB}, s{sTmp}, {112*1024}")
    a(f"s_add_u32 s{sB}, s{sB}, {WS_H}")
    a(f"s_lshl_b32 s{sOoff}, s{sTmp}, 4")
    a(f"s_add_u32 s{sOoff}, s{sOoff}, s{sTmp2}")
    a(f"s_lshl_b32 s{sOoff}, s{sOoff}, 11")
    a(f"s_add_u32 s{sOoff}, s{sOoff}, {WS_G}")
    sA2, sB2 = 22, 23

    def gload(k):
        sa, sb = (sA, sB) if k < 4 else (sA2, sB2)
        a(f"buffer_load_dwordx4 v[{gA+4*k}:{gA+4*k+3}], v{vL16}, s[{SWS}:{SWS+3}], s{sa} offen offset:{(k%4)*1024}")
        a(f"buffer_load_dwordx4 v[{gB+4*k}:{gB+4*k+3}], v{vL16}, s[{SWS}:{SWS+3}], s{sb} offen offset:{(k%4)*1024}")

    def adv():
        a(f"s_add_u32 s{sA}, s{sA}, 8192")
        a(f"s_add_u32 s{sB}, s{sB}, 8192")
        a(f"s_add_u32 s{sA2}, s{sA2}, 8192")
        a(f"s_add_u32 s{sB2}, s{sB2}, 8192")

    a(f"s_add_u32 s{sA2}, s{sA}, 4096")
    a(f"s_add_u32 s{sB2}, s{sB}, 4096")
    for k in range(8):
        gload(k)
    adv()
    a("s_barrier")
    acc = f"v[{gAcc}:{gAcc+15}]"

    def gblock(first=False, last=False):
        for k in range(8):
            n = 14 - 2 * k if last else 14
            a(f"s_waitcnt vmcnt({n})")
            cc = "0" if (first and k == 0) else acc
            a(f"v_mfma_f32_32x32x16_bf16 {acc}, v[{gA+4*k}:{gA+4*k+3}], v[{gB+4*k}:{gB+4*k+3}], {cc}")
            if not last:
                gload(k)
        if not last:
            adv()

    gblock(first=True)
    a("s_barrier")
    a(f"s_mov_b32 s{sLoop}, 12")
    a.label(f"{name}_gloop")
    m = a.mark()
    gblock()
    a(f"s_sub_u32 s{sLoop}, s{sLoop}, 1")
    a(f"s_cmp_lg_u32 s{sLoop}, 0")
    a(f"s_cbranch_scc1 {name}_gloop")
    a.check_loop(m, name + "_gloop")
    gblock(last=True)
    a(f"s_mov_b32 s{sTmp}, {hex(f2u(-1.4426950408889634))}")
    a("s_nop 7")
    a("s_nop 3")
    X = gT
    for r in range(16):
        a(f"v_mul_f32 v{X+r}, s{sTmp}, v{gAcc+r}")
    for r in range(16):
        a(f"v_exp_f32 v{X+r}, v{X+r}")
    for r in range(16):
        a(f"v_add_f32 v{X+r}, 1.0, v{X+r}")
    for r in range(16):
        a(f"v_rcp_f32 v{X+r}, v{X+r}")
    for r in range(16):
        a(f"v_mul_f32 v{X+r}, v{X+r}, v{gAcc+r}")
    for r in range(8):
        a(f"v_cvt_pk_bf16_f32 v{gA+r}, v{X+2*r}, v{X+2*r+1}")
    a(f"buffer_store_dwordx4 v[{gA}:{gA+3}], v{vL16}, s[{SWS}:{SWS+3}], s{sOoff} offen")
    a(f"buffer_store_dwordx4 v[{gA+4}:{gA+7}], v{vL16}, s[{SWS}:{SWS+3}], s{sOoff} offen offset:1024")
    a.label(f"{name}_end")
    a("s_endpgm")
    a.finish(name)
    desc = f"""
.amdhsa_kernel {name}
  .amdhsa_next_free_vgpr 112
  .amdhsa_next_free_sgpr 32
  .amdhsa_accum_offset 112
  .amdhsa_group_segment_fixed_size 0
  .amdhsa_kernarg_size 80
  .amdhsa_user_sgpr_count 2
  .amdhsa_user_sgpr_kernarg_segment_ptr 1
  .amdhsa_system_sgpr_workgroup_id_x 1
.end_amdhsa_kernel
"""
    return desc, K2_LDS
```

```python
from asmlib import *
from k1 import WS_Q, WS_K, WS_V, WS_O, WS_G, WS_WF, WS_H, WS_SIZE, f2u


def gen_k3(a, name):
    sW = 3
    SWS, SX, SO = 8, 12, 16
    sTmp, sTmp2, sTmp3, sA, sB, sG, sXo = 20, 21, 22, 23, 24, 25, 26
    vLane, vL16, vXo = 1, 2, 3
    vG = 4
    vXv = 12
    vAcc = 20
    vA = 36
    vB = 100
    a.raw(f".p2align 8\n.globl {name}\n.type {name},@function\n{name}:")
    a("s_cmp_ge_u32 s2, 256")
    a(f"s_cbranch_scc1 {name}_end")
    a("""
    s_load_dwordx2 s[6:7], s[0:1], 72
    s_load_dwordx2 s[28:29], s[0:1], 0
    s_load_dwordx2 s[30:31], s[0:1], 56
    v_lshrrev_b32 v2, 6, v0
    v_and_b32 v1, 63, v0
    s_nop 0
    v_readfirstlane_b32 s3, v2
    """)
    a(f"v_lshlrev_b32 v{vL16}, 4, v{vLane}")
    a(f"s_lshr_b32 s{sTmp}, s2, 3")
    a(f"s_lshl_b32 s{sTmp}, s{sTmp}, 1")
    a(f"s_lshr_b32 s{sTmp2}, s{sW}, 1")
    a(f"s_add_u32 s{sTmp}, s{sTmp}, s{sTmp2}")
    a(f"s_and_b32 s{sTmp2}, s2, 7")
    a(f"s_lshl_b32 s{sTmp2}, s{sTmp2}, 1")
    a(f"s_and_b32 s{sTmp3}, s{sW}, 1")
    a(f"s_add_u32 s{sTmp2}, s{sTmp2}, s{sTmp3}")
    a(f"s_mul_i32 s{sA}, s{sTmp2}, {144*1024}")
    a(f"s_add_u32 s{sA}, s{sA}, {WS_WF + 112*1024}")
    a(f"s_lshl_b32 s{sB}, s{sTmp}, 15")
    a(f"s_add_u32 s{sB}, s{sB}, {WS_O}")
    a(f"s_lshl_b32 s{sG}, s{sTmp}, 4")
    a(f"s_add_u32 s{sG}, s{sG}, s{sTmp2}")
    a(f"s_lshl_b32 s{sG}, s{sG}, 11")
    a(f"s_add_u32 s{sG}, s{sG}, {WS_G}")
    a(f"s_lshl_b32 s{sXo}, s{sTmp}, 15")
    a(f"s_lshl_b32 s{sTmp3}, s{sTmp2}, 6")
    a(f"s_add_u32 s{sXo}, s{sXo}, s{sTmp3}")
    a(f"v_and_b32 v{vXo}, 31, v{vLane}")
    a(f"v_lshlrev_b32 v{vXo}, 10, v{vXo}")
    a(f"v_lshrrev_b32 v{vG}, 5, v{vLane}")
    a(f"v_lshl_add_u32 v{vXo}, v{vG}, 3, v{vXo}")
    a("s_waitcnt lgkmcnt(0)")
    for d, lo, size in ((SWS, 6, WS_SIZE), (SX, 28, 2048 * 1024), (SO, 30, 2048 * 1024)):
        a(f"s_mov_b32 s{d}, s{lo}")
        a(f"s_and_b32 s{d+1}, s{lo+1}, 0xffff")
        a(f"s_mov_b32 s{d+2}, {size}")
        a(f"s_mov_b32 s{d+3}, 0x00020000")

    def loads(base):
        for k in range(16):
            if k % 4 == 0:
                a(f"s_add_u32 s{sTmp}, s{sA}, {(base+k)*1024}")
                a(f"s_add_u32 s{sTmp2}, s{sB}, {(base+k)*1024}")
            a(f"buffer_load_dwordx4 v[{vA+4*k}:{vA+4*k+3}], v{vL16}, s[{SWS}:{SWS+3}], s{sTmp} offen offset:{(k%4)*1024}")
            a(f"buffer_load_dwordx4 v[{vB+4*k}:{vB+4*k+3}], v{vL16}, s[{SWS}:{SWS+3}], s{sTmp2} offen offset:{(k%4)*1024}")
    loads(0)
    acc = f"v[{vAcc}:{vAcc+15}]"
    for k in range(16):
        a(f"s_waitcnt vmcnt(30)")
        cc = "0" if k == 0 else acc
        a(f"v_mfma_f32_32x32x16_bf16 {acc}, v[{vA+4*k}:{vA+4*k+3}], v[{vB+4*k}:{vB+4*k+3}], {cc}")
        if k % 4 == 0:
            a(f"s_add_u32 s{sTmp}, s{sA}, {(16+k)*1024}")
            a(f"s_add_u32 s{sTmp2}, s{sB}, {(16+k)*1024}")
        a(f"buffer_load_dwordx4 v[{vA+4*k}:{vA+4*k+3}], v{vL16}, s[{SWS}:{SWS+3}], s{sTmp} offen offset:{(k%4)*1024}")
        a(f"buffer_load_dwordx4 v[{vB+4*k}:{vB+4*k+3}], v{vL16}, s[{SWS}:{SWS+3}], s{sTmp2} offen offset:{(k%4)*1024}")
    a(f"buffer_load_dwordx4 v[{vG}:{vG+3}], v{vL16}, s[{SWS}:{SWS+3}], s{sG} offen")
    a(f"buffer_load_dwordx4 v[{vG+4}:{vG+7}], v{vL16}, s[{SWS}:{SWS+3}], s{sG} offen offset:1024")
    for q4 in range(4):
        a(f"buffer_load_dwordx2 v[{vXv+2*q4}:{vXv+2*q4+1}], v{vXo}, s[{SX}:{SX+3}], s{sXo} offen offset:{q4*16}")
    for k in range(16):
        a(f"s_waitcnt vmcnt({30 - 2*k + 6})")
        a(f"v_mfma_f32_32x32x16_bf16 {acc}, v[{vA+4*k}:{vA+4*k+3}], v[{vB+4*k}:{vB+4*k+3}], {acc}")
    a("s_mov_b32 s27, 0xffff0000")
    a("s_waitcnt vmcnt(0)")
    a("s_nop 7")
    a("s_nop 3")
    T = vA
    for r in range(8):
        a(f"v_cvt_pk_bf16_f32 v{T+r}, v{vAcc+2*r}, v{vAcc+2*r+1}")
    for r in range(8):
        a(f"v_lshlrev_b32 v{vAcc+2*r}, 16, v{T+r}")
        a(f"v_and_b32 v{vAcc+2*r+1}, s27, v{T+r}")
        a(f"v_lshlrev_b32 v{T+8+2*r}, 16, v{vG+r}")
        a(f"v_and_b32 v{T+8+2*r+1}, s27, v{vG+r}")
    for r in range(16):
        a(f"v_mul_f32 v{vAcc+r}, v{vAcc+r}, v{T+8+r}")
    for r in range(8):
        a(f"v_cvt_pk_bf16_f32 v{T+r}, v{vAcc+2*r}, v{vAcc+2*r+1}")
    for r in range(8):
        a(f"v_lshlrev_b32 v{vAcc+2*r}, 16, v{T+r}")
        a(f"v_and_b32 v{vAcc+2*r+1}, s27, v{T+r}")
        a(f"v_lshlrev_b32 v{T+8+2*r}, 16, v{vXv+r}")
        a(f"v_and_b32 v{T+8+2*r+1}, s27, v{vXv+r}")
    for r in range(16):
        a(f"v_add_f32 v{vAcc+r}, v{vAcc+r}, v{T+8+r}")
    for r in range(8):
        a(f"v_cvt_pk_bf16_f32 v{T+r}, v{vAcc+2*r}, v{vAcc+2*r+1}")
    for q4 in range(4):
        a(f"buffer_store_dwordx2 v[{T+2*q4}:{T+2*q4+1}], v{vXo}, s[{SO}:{SO+3}], s{sXo} offen offset:{q4*16}")
    a.label(f"{name}_end")
    a("s_endpgm")
    a.finish(name)
    desc = f"""
.amdhsa_kernel {name}
  .amdhsa_next_free_vgpr 168
  .amdhsa_next_free_sgpr 32
  .amdhsa_accum_offset 168
  .amdhsa_group_segment_fixed_size 0
  .amdhsa_kernarg_size 80
  .amdhsa_user_sgpr_count 2
  .amdhsa_user_sgpr_kernarg_segment_ptr 1
  .amdhsa_system_sgpr_workgroup_id_x 1
.end_amdhsa_kernel
"""
    return desc, 0
```

```python
import sys, os
sys.path.insert(0, os.path.dirname(__file__))
from asmlib import *
import k1
NAME = "recurrent_scan__softmax_full_mha__glu_gated_geglu__prompt"
HDR = open("cdna_kernels/%s.s.ref" % NAME).read().split("; Override launch geometry")[0]

STAMPS = bool(os.environ.get("STAMPS"))
def build(which=("k1", "k2", "k3"), out=None):
    a = Asm()
    descs = []
    launches = []
    if "k1" in which:
        d, lds = k1.gen_k1(a, "k1_kernel", stamps=STAMPS); descs.append(d)
        launches.append(f"; @launch kernel=k1_kernel grid=(256,1,1) block=(256,1,1) lds={lds}")
    if "k2" in which:
        import k2
        d, lds = k2.gen_k2(a, "k2_kernel"); descs.append(d)
        launches.append(f"; @launch kernel=k2_kernel grid=(256,1,1) block=(768,1,1) lds={lds}")
    if "k3" in which:
        import k3
        d, lds = k3.gen_k3(a, "k3_kernel"); descs.append(d)
        launches.append(f"; @launch kernel=k3_kernel grid=(256,1,1) block=(256,1,1) lds={lds}")
    if a.errs:
        print("HAZARDS:", len(a.errs))
        for e in a.errs[:40]:
            print(e)
    txt = HDR + "\n".join(launches) + "\n"
    txt += '.amdgcn_target "amdgcn-amd-amdhsa--gfx950"\n.text\n'
    txt += a.text()
    txt += '.section .rodata,"a"\n.p2align 6\n' + "".join(descs)
    out = out or "cdna_kernels/%s.s" % NAME
    open(out, "w").write(txt)
    return out

if __name__ == "__main__":
    which = tuple(sys.argv[1].split(",")) if len(sys.argv) > 1 else ("k1", "k2", "k3")
    out = sys.argv[2] if len(sys.argv) > 2 else None
    print(build(which, out))
```

```python
import re

TRANS = ("v_exp_f32", "v_log_f32", "v_rcp_f32", "v_rsq_f32", "v_sqrt_f32", "v_sin_f32", "v_cos_f32",
         "v_exp_f16", "v_rcp_iflag_f32")

_reg_re = re.compile(r"^(-|abs\()?([vas])(\d+)\)?$")
_rng_re = re.compile(r"^(-)?([vas])\[(\d+):(\d+)\]$")


def regs_of(op):
    op = op.strip()
    m = _reg_re.match(op)
    if m:
        return {(m.group(2), int(m.group(3)))}
    m = _rng_re.match(op)
    if m:
        return {(m.group(2), i) for i in range(int(m.group(3)), int(m.group(4)) + 1)}
    if op == "vcc":
        return {("vcc", 0)}
    if op == "exec":
        return {("exec", 0)}
    if op == "m0":
        return {("m0", 0)}
    if op == "scc":
        return {("scc", 0)}
    return set()


class Ins:
    __slots__ = ("text", "mn", "ops", "wr", "rd", "kind", "passes", "a", "b", "c", "d", "ws", "is_lds_dma")

    def __init__(self, text):
        self.text = text
        t = text.split(";")[0].strip()
        parts = t.split(None, 1)
        self.mn = mn = parts[0]
        rest = parts[1] if len(parts) > 1 else ""
        ops = [o.strip() for o in re.split(r",(?![^\[]*\])", rest)] if rest else []
        mods = []
        if ops:
            sp = ops[-1].split()
            ops[-1] = sp[0] if sp else ""
            mods = sp[1:]
        self.ops = ops
        self.wr = set()
        self.rd = set()
        self.passes = 0
        self.ws = 1
        self.is_lds_dma = False
        self.a = self.b = self.c = self.d = set()
        R = regs_of
        if mn == "s_nop":
            self.kind = "nop"
            self.ws = int(ops[0], 0) + 1
        elif mn.startswith("v_mfma"):
            self.kind = "mfma"
            self.passes = 8 if "32x32" in mn else 4
            self.d, self.a, self.b, self.c = R(ops[0]), R(ops[1]), R(ops[2]), R(ops[3])
            self.wr = set(self.d)
            self.rd = self.a | self.b | self.c
        elif mn.startswith("v_cmp"):
            self.kind = "valu"
            self.wr = R(ops[0])
            for o in ops[1:]:
                self.rd |= R(o)
        elif mn.startswith("v_permlane") and "swap" in mn:
            self.kind = "valu"
            self.wr = R(ops[0]) | R(ops[1])
            self.rd = set(self.wr)
        elif mn.startswith("v_"):
            self.kind = "valu"
            self.wr = R(ops[0])
            start = 1
            if mn in ("v_add_co_u32", "v_addc_co_u32", "v_sub_co_u32"):
                self.wr |= R(ops[1])
                start = 2
            for o in ops[start:]:
                self.rd |= R(o)
            if mn.startswith("v_fmac") or mn.startswith("v_dot2c") or "d16" in mn:
                self.rd |= R(ops[0])
            if mn.startswith("v_cndmask") and len(ops) == 3:
                self.rd |= {("vcc", 0)}
        elif mn.startswith("ds_read") or mn.startswith("ds_bpermute") or mn.startswith("ds_swizzle"):
            self.kind = "ds"
            self.wr = R(ops[0])
            for o in ops[1:]:
                self.rd |= R(o)
        elif mn.startswith("ds_write"):
            self.kind = "ds"
            for o in ops:
                self.rd |= R(o)
        elif mn.startswith("buffer_load") or mn.startswith("global_load"):
            self.kind = "vmem"
            if "lds" in mods or "_lds_" in mn:
                self.is_lds_dma = True
                for o in ops:
                    self.rd |= R(o)
                self.rd |= {("m0", 0)}
            else:
                self.wr = R(ops[0])
                for o in ops[1:]:
                    self.rd |= R(o)
                if "d16" in mn:
                    self.rd |= R(ops[0])
        elif mn.startswith("buffer_store") or mn.startswith("global_store") or mn.startswith("buffer_atomic") or mn.startswith("global_atomic"):
            self.kind = "vmemst"
            for o in ops:
                self.rd |= R(o)
        elif mn.startswith("s_"):
            self.kind = "salu"
            if mn.startswith("s_cmp") or mn.startswith("s_cbranch") or mn in ("s_branch", "s_barrier", "s_waitcnt", "s_endpgm", "s_setprio", "s_sleep"):
                for o in ops:
                    self.rd |= R(o)
            else:
                self.wr = R(ops[0])
                for o in ops[1:]:
                    self.rd |= R(o)
                if "saveexec" in mn:
                    self.wr |= {("exec", 0)}
        else:
            raise ValueError("unknown instr " + text)


def check(seq, name=""):
    errs = []
    n = len(seq)
    for i, c in enumerate(seq):
        if c.kind in ("nop", "salu") and not (c.kind == "salu"):
            continue
        dist = 0
        j = i - 1
        while j >= 0 and dist < 24:
            p = seq[j]

            def need(k, why):
                if dist < k:
                    errs.append(f"{name}[{i}] need {k} have {dist}: {why}\n    P: {p.text}\n    C: {c.text}")

            if p.kind == "valu":
                pw = p.wr
                if c.kind == "mfma" and (pw & c.rd):
                    need(2, "VALU write -> MFMA read")
                if c.kind == "valu":
                    if p.mn in TRANS and c.mn not in TRANS and (pw & c.rd):
                        need(1, "trans -> valu")
                    if c.mn.startswith("v_readfirstlane") or c.mn.startswith("v_readlane"):
                        if pw & c.rd:
                            need(1, "valu -> readlane")
                    if c.mn.startswith("v_permlane") and (pw & c.rd):
                        need(2, "valu -> permlane")
                    sw = {r for r in pw if r[0] in ("s", "vcc")}
                    if sw & c.rd:
                        need(2, "valu writes sgpr -> valu reads")
                if c.kind in ("vmem", "vmemst"):
                    sw = {r for r in pw if r[0] in ("s", "vcc")}
                    if sw & c.rd:
                        need(5, "valu writes sgpr -> vmem reads")
            if p.kind == "mfma":
                big = 12 if p.passes == 8 else 8
                if c.kind == "mfma":
                    if p.d & (c.a | c.b):
                        need(big, "MFMA D -> MFMA A/B")
                    if (p.d & c.c) and p.d != c.c:
                        need(10 if p.passes == 8 else 6, "MFMA D -> MFMA C partial")
                    if (p.d & c.d) and not (p.d == c.c):
                        need(10 if p.passes == 8 else 6, "MFMA D -> MFMA D WAW")
                elif c.kind in ("valu", "ds", "vmem", "vmemst"):
                    if p.d & (c.rd | c.wr):
                        need(big, "MFMA D -> valu/mem access")
                if c.kind == "valu" and (p.c & c.wr):
                    need(7 if p.passes == 8 else 3, "MFMA reads C -> VALU writes (WAR)")
            if p.kind == "salu" and ("m0", 0) in p.wr and c.is_lds_dma:
                need(1, "m0 write -> lds dma")
            if p.kind == "vmemst" and ("x4" in p.mn or "x3" in p.mn) and c.kind == "valu":
                data = regs_of(p.ops[0]) if p.mn.startswith("buffer") else regs_of(p.ops[1])
                if data & c.wr:
                    need(2, "store data WAR")
            dist += p.ws
            j -= 1
    return errs


class Asm:
    def __init__(self):
        self.out = []
        self.seq = []
        self.errs = []
        self.stflag = ""

    def raw(self, t):
        self.out.append(t)

    def c(self, t):
        self.out.append("    ; " + t)

    def __call__(self, t):
        import os
        for ln in t.strip().split("\n"):
            ln = ln.strip()
            if not ln:
                continue
            if ln.startswith("buffer_store") and self.stflag:
                ln = ln + " " + self.stflag
            ins = Ins(ln)
            self.seq.append(ins)
            self.out.append("    " + ln)

    def label(self, l):
        self.out.append(l + ":")

    def mark(self):
        return len(self.seq)

    def check_loop(self, start, name="loop"):
        body = self.seq[start:]
        self.errs += check(body + body, name)

    def finish(self, name="lin"):
        self.errs += check(self.seq, name)
        self.seq = []
        return self.errs

    def text(self):
        return "\n".join(self.out) + "\n"


def vr(b, n=1):
    return f"v{b}" if n == 1 else f"v[{b}:{b+n-1}]"


def ar(b, n=1):
    return f"a{b}" if n == 1 else f"a[{b}:{b+n-1}]"


def sr(b, n=1):
    return f"s{b}" if n == 1 else f"s[{b}:{b+n-1}]"


def interleave(main, fill, per=None):
    out = []
    n = len(main)
    m = len(fill)
    k = 0
    for i, g in enumerate(main):
        out += g
        tgt = (m * (i + 1) + n - 1) // n if per is None else min(m, per * (i + 1))
        while k < tgt:
            out.append(fill[k])
            k += 1
    while k < m:
        out.append(fill[k])
        k += 1
    return out


WS_DBG = 30 << 20

def wg_begin(a, base=90):
    a(f"s_memtime s[{base}:{base+1}]")
    a(f"s_memrealtime s[{base+2}:{base+3}]")
    a("s_waitcnt lgkmcnt(0)")

def wg_end(a, srd, kid, vtmp, base=90, guard_wave_sgpr=None, label=None):
    a(f"s_memtime s[{base+4}:{base+5}]")
    a(f"s_memrealtime s[{base+6}:{base+7}]")
    a("s_waitcnt lgkmcnt(0)")
    a(f"v_mov_b32 v{vtmp}, s{base}")
    a(f"v_mov_b32 v{vtmp+1}, s{base+2}")
    a(f"v_mov_b32 v{vtmp+2}, s{base+4}")
    a(f"v_mov_b32 v{vtmp+3}, s{base+6}")
    a(f"s_lshl_b32 s{base}, s2, 4")
    a(f"s_add_u32 s{base}, s{base}, s3")
    a(f"s_lshl_b32 s{base}, s{base}, 4")
    a(f"s_add_u32 s{base}, s{base}, {WS_DBG + kid*65536}")
    a(f"v_mov_b32 v{vtmp+4}, 0")
    a(f"buffer_store_dwordx4 v[{vtmp}:{vtmp+3}], v{vtmp+4}, s[{srd}:{srd+3}], s{base} offen")
```

```python
from asmlib import *

MB = 1 << 20
WS_Q, WS_K, WS_V, WS_O, WS_G, WS_WF, WS_H = 0, 2 * MB, 4 * MB, 6 * MB, 8 * MB, 10 * MB, 16 * MB
WS_SIZE = 32 * MB

SLOT = 28928
UPOFF = 14464
NSLOT = 5
XPITCH = 1040
XW = 32 * XPITCH
SLOT4 = 4 * XW
K1_LDS = SLOT4 + SLOT
def slot_addr(s):
    k = (s + 4) % 5
    return SLOT4 if k == 4 else k * SLOT

QSCALE = 0.25 * 1.4426950408889634


def f2u(f):
    import struct
    return struct.unpack("<I", struct.pack("<f", f))[0]


class VQ:
    def __init__(self):
        self.n = 0
        self.tags = {}

    def issue(self, tag=None, k=1):
        self.n += k
        if tag is not None:
            self.tags[tag] = self.n

    def wait(self, tag):
        return self.n - self.tags[tag]


def gen_k1(a, name, stamps=False):
    st_n = [0]
    def stamp():
        if not stamps:
            return
        k = 72 + 2 * st_n[0]
        st_n[0] += 1
        a(f"s_memtime s[{k}:{k+1}]")
        a("s_waitcnt lgkmcnt(0)")

    sW, sRB, sCB = 3, 4, 5
    SX, SWQ, SWA, SWS, ST, SWS2 = 8, 12, 16, 24, 28, 32
    sOnes, sMask, sDmaA, sDmaB, sStA, sStB, sTmp, sTmp2, sTmp3 = 36, 37, 38, 39, 54, 55, 56, 57, 58
    sRT = 59
    sQoff, sVoff, sHoff = 60, 61, 62
    vLane, vT0, vT1 = 1, 2, 3
    vXoff = 4
    vA = 5
    vB = 12
    vRA = 13
    vRB = 16
    vL16 = 19
    vVoff = 20
    vR = 22
    vC = 24
    vK1, vK2 = 26, 27
    vTmp = 28
    vW = 44
    vX = 100
    vE = 228
    aM = 0
    aQ = 112

    q = VQ()
    a.raw(f".p2align 8\n.globl {name}\n.type {name},@function\n{name}:")
    a(f"s_cmp_ge_u32 s2, 256")
    a(f"s_cbranch_scc1 {name}_end")
    if stamps:
        wg_begin(a, 92)
    a("""
    s_load_dwordx4 s[40:43], s[0:1], 0
    s_load_dwordx4 s[44:47], s[0:1], 32
    s_load_dwordx2 s[48:49], s[0:1], 16
    s_load_dwordx2 s[50:51], s[0:1], 48
    s_load_dwordx2 s[52:53], s[0:1], 72
    v_lshrrev_b32 v2, 6, v0
    v_and_b32 v1, 63, v0
    s_nop 0
    v_readfirstlane_b32 s3, v2
    s_bfe_u32 s4, s2, 0x20001
    s_lshl_b32 s4, s4, 2
    s_lshr_b32 s5, s2, 6
    s_add_u32 s4, s4, s5
    s_and_b32 s5, s2, 1
    s_lshl_b32 s5, s5, 3
    s_bfe_u32 s6, s2, 0x30003
    s_add_u32 s5, s5, s6
    """)
    a(f"s_mov_b32 s{sOnes}, 0x3f803f80")
    a(f"s_mov_b32 s{sMask}, 0xffff0000")
    a(f"s_lshl_b32 s{sRT}, s{sRB}, 2")
    a(f"s_add_u32 s{sRT}, s{sRT}, s{sW}")
    t0, t1, t2, t3 = vTmp, vTmp + 1, vTmp + 2, vTmp + 3
    a(f"v_and_b32 v{t0}, 31, v{vLane}")
    a(f"v_lshrrev_b32 v{t1}, 5, v{vLane}")
    a(f"v_lshlrev_b32 v{vL16}, 4, v{vLane}")
    a(f"s_lshl_b32 s70, s{sRT}, 15")
    a(f"s_mul_i32 s71, s{sW}, {XW}")
    a(f"v_mul_u32_u24 v{vXoff}, {XPITCH}, v{t0}")
    a(f"v_lshl_add_u32 v{vXoff}, v{t1}, 6, v{vXoff}")
    a(f"v_add_u32 v{vXoff}, s71, v{vXoff}")
    a(f"v_lshlrev_b32 v{vT0}, 12, v{t1}")
    a(f"v_lshl_add_u32 v{vT0}, v{t0}, 1, v{vT0}")
    a(f"v_add_u32 v{vT1}, 8192, v{vT0}")
    a(f"v_bfe_u32 v{t2}, v{vLane}, 4, 1")
    a(f"v_lshlrev_b32 v{vVoff}, 16, v{t2}")
    a(f"v_lshl_add_u32 v{vVoff}, v{t1}, 8, v{vVoff}")
    a(f"v_and_b32 v{t2}, 15, v{vLane}")
    a(f"v_lshl_add_u32 v{vVoff}, v{t2}, 4, v{vVoff}")
    a(f"s_and_b32 s{sTmp}, s{sW}, 1")
    a(f"s_mul_i32 s{sTmp}, s{sTmp}, {32*3584}")
    a(f"s_mul_i32 s{sTmp2}, s{sCB}, 224")
    a(f"s_add_u32 s{sTmp}, s{sTmp}, s{sTmp2}")
    for i in range(7):
        a(f"v_add_u32 v{t2}, {i*64}, v{vLane}")
        a(f"v_mul_u32_u24 v{t3}, 4682, v{t2}")
        a(f"v_lshrrev_b32 v{t3}, 16, v{t3}")
        a(f"v_mul_u32_u24 v{vA+i}, 14, v{t3}")
        a(f"v_sub_u32 v{t2}, v{t2}, v{vA+i}")
        a(f"v_mul_u32_u24 v{vA+i}, 3584, v{t3}")
        a(f"v_lshl_add_u32 v{vA+i}, v{t2}, 4, v{vA+i}")
        a(f"v_add_u32 v{vA+i}, s{sTmp}, v{vA+i}")
    a(f"s_lshl_b32 s{sTmp}, s{sW}, 4")
    a(f"v_lshrrev_b32 v{t2}, 2, v{vLane}")
    a(f"v_add_u32 v{t2}, s{sTmp}, v{t2}")
    a(f"v_mul_u32_u24 v{vB}, 3072, v{t2}")
    a(f"v_and_b32 v{t2}, 3, v{vLane}")
    a(f"v_lshl_add_u32 v{vB}, v{t2}, 4, v{vB}")
    a(f"s_lshl_b32 s{sTmp}, s{sCB}, 6")
    a(f"v_add_u32 v{vB}, s{sTmp}, v{vB}")
    a(f"v_bfe_u32 v{t2}, v{vLane}, 2, 2")
    a(f"v_lshl_add_u32 v{t2}, v{t1}, 5, v{t2}")
    a(f"v_and_b32 v{t3}, 3, v{vLane}")
    a(f"v_bfe_u32 v{t0}, v{vLane}, 4, 1")
    a(f"v_mul_u32_u24 v{vRA}, 224, v{t2}")
    a(f"v_lshl_add_u32 v{vRA}, v{t3}, 3, v{vRA}")
    a(f"v_mul_u32_u24 v{vRB}, {UPOFF}, v{t0}")
    a(f"v_add_u32 v{vRA}, v{vRA}, v{vRB}")
    a(f"v_add_u32 v{vRA+1}, {2*SLOT}, v{vRA}")
    a(f"v_add_u32 v{vRA+2}, {SLOT4}, v{vRA}")
    a(f"v_lshlrev_b32 v{vRB}, 6, v{t2}")
    a(f"v_lshl_add_u32 v{vRB}, v{t3}, 3, v{vRB}")
    a(f"v_lshl_add_u32 v{vRB}, v{t0}, 5, v{vRB}")
    a(f"v_add_u32 v{vRB+1}, {2*SLOT}, v{vRB}")
    a(f"v_add_u32 v{vRB+2}, {SLOT4}, v{vRB}")
    a(f"v_mov_b32 v{vK1}, {hex(f2u(-2*0.7978845608028654*1.4426950408889634))}")
    a(f"v_mov_b32 v{vK2}, {hex(f2u(-2*0.7978845608028654*1.4426950408889634*0.044715))}")
    a(f"s_lshr_b32 s{sTmp}, s{sW}, 1")
    a(f"s_mul_i32 s{sDmaA}, s{sTmp}, {UPOFF}")
    a(f"s_and_b32 s{sTmp}, s{sW}, 1")
    a(f"s_mul_i32 s{sTmp}, s{sTmp}, 7168")
    a(f"s_add_u32 s{sDmaA}, s{sDmaA}, s{sTmp}")
    a(f"s_lshl_b32 s{sDmaB}, s{sW}, 10")
    a("s_waitcnt lgkmcnt(0)")
    def srd(d, lo, size):
        a(f"s_mov_b32 s{d}, s{lo}")
        a(f"s_and_b32 s{d+1}, s{lo+1}, 0xffff")
        a(f"s_mov_b32 s{d+2}, {size}")
        a(f"s_mov_b32 s{d+3}, 0x00020000")
    srd(SX, 40, 2048 * 1024)
    stamp()
    for r in range(32):
        a(f"s_add_u32 m0, s71, {r*XPITCH}")
        a(f"s_add_u32 s{sTmp2}, s70, {r*1024}")
        a(f"buffer_load_dwordx4 v{vL16}, s[{SX}:{SX+3}], s{sTmp2} offen lds")
        q.issue("x")

    srd(SWQ, 42, 512 * 3072)
    srd(SWS, 52, WS_SIZE)
    a(f"s_cmp_lt_u32 s{sW}, 2")
    a(f"s_cselect_b32 s{SWA}, s44, s46")
    a(f"s_cselect_b32 s{SWA+1}, s45, s47")
    a(f"s_and_b32 s{SWA+1}, s{SWA+1}, 0xffff")
    a(f"s_mov_b32 s{SWA+2}, {512*3584}")
    a(f"s_mov_b32 s{SWA+3}, 0x00020000")

    def dma_stage(s):
        out = []
        slot = slot_addr(s)
        if s < 8:
            for i in range(7):
                out.append(f"s_add_u32 m0, s{sDmaA}, {slot + i*1024}")
                out.append(f"s_mov_b32 s{sStA}, {s*64*3584}")
                out.append(f"buffer_load_dwordx4 v{vA+i}, s[{SWA}:{SWA+3}], s{sStA} offen lds")
        else:
            sp = s - 8
            for t in range(3):
                out.append(f"s_add_u32 m0, s{sDmaB}, {slot + t*4096}")
                out.append(f"s_mov_b32 s{sStB}, {sp*64*3072 + t*1024}")
                out.append(f"buffer_load_dwordx4 v{vB}, s[{SWQ}:{SWQ+3}], s{sStB} offen lds")
        return out

    def dma_count(s):
        return 7 if s < 8 else 3

    for s in range(1):
        for l in dma_stage(s):
            a(l)
        q.issue(("st", s), dma_count(s))
    a(f"s_waitcnt vmcnt({q.wait('x')})")
    stamp()
    vOne = vE
    for r in range(4):
        a(f"v_mov_b32 v{vOne+r}, s{sOnes}")
    for g in range(8):
        for i in range(4):
            f = 4 * g + i
            a(f"ds_read_b128 v[{vX+4*f}:{vX+4*f+3}], v{vXoff} offset:{g*128+i*16}")
    S1, S2 = vTmp, vTmp + 4
    a("s_waitcnt lgkmcnt(0)")
    a("s_barrier")
    dgs = []
    for st in range(1, 2):
        cur = []
        for l in dma_stage(st):
            cur.append(l)
            if l.startswith("buffer_load"):
                dgs.append((st, cur)); cur = []
    for f in range(32):
        cc = "0" if f == 0 else f"a[{aQ}:{aQ+15}]"
        a(f"v_mfma_f32_32x32x16_bf16 a[{aQ}:{aQ+15}], v[{vOne}:{vOne+3}], v[{vX+4*f}:{vX+4*f+3}], {cc}")
        for r in range(4 * f, 4 * f + 4):
            k = r % 4
            c2 = "0" if r < 4 else f"v{S2+k}"
            a(f"v_dot2_f32_bf16 v{S2+k}, v{vX+r}, v{vX+r}, {c2}")
        if f % 4 == 0 and f // 4 < len(dgs):
            st, g = dgs[f // 4]
            for l in g:
                a(l)
            q.issue(("st", st))
    a(f"""
    s_nop 7
    v_add_f32 v{S2}, v{S2}, v{S2+1}
    v_add_f32 v{S2+2}, v{S2+2}, v{S2+3}
    v_accvgpr_read_b32 v{S1}, a{aQ}
    v_add_f32 v{S2}, v{S2}, v{S2+2}
    s_nop 0
    v_mov_b32 v{S2+1}, v{S2}
    s_nop 1
    v_permlane32_swap_b32 v{S2}, v{S2+1}
    s_nop 1
    v_add_f32 v{S2}, v{S2}, v{S2+1}
    v_mul_f32 v{S1}, {hex(f2u(1/512))}, v{S1}
    v_mul_f32 v{S2}, {hex(f2u(1/512))}, v{S2}
    v_fma_f32 v{S2}, -v{S1}, v{S1}, v{S2}
    v_max_f32 v{S2}, 0, v{S2}
    v_cvt_pk_bf16_f32 v{S1+2}, v{S1}, v{S2}
    v_lshlrev_b32 v{S1}, 16, v{S1+2}
    v_and_b32 v{S2}, s{sMask}, v{S1+2}
    v_add_f32 v{S2}, {hex(f2u(1e-5))}, v{S2}
    v_cvt_pk_bf16_f32 v{S2}, v{S2}, v{S2}
    v_and_b32 v{S2}, s{sMask}, v{S2}
    v_sqrt_f32 v{S2}, v{S2}
    s_nop 0
    v_cvt_pk_bf16_f32 v{S2}, v{S2}, v{S2}
    v_and_b32 v{S2}, s{sMask}, v{S2}
    v_rcp_f32 v{vR}, v{S2}
    s_nop 0
    v_mov_b32 v{vR+1}, v{vR}
    v_mul_f32 v{vC}, -v{S1}, v{vR}
    v_mov_b32 v{vC+1}, v{vC}
    """)

    def norm_frag(f):
        out = []
        for r in range(4):
            x = vX + 4 * f + r
            tt = vTmp + 2 * r
            out.append(f"v_lshlrev_b32 v{tt}, 16, v{x}")
            out.append(f"v_and_b32 v{tt+1}, s{sMask}, v{x}")
        for r in range(4):
            tt = vTmp + 2 * r
            out.append(f"v_fma_f32 v{tt}, v{tt}, v{vR}, v{vC}")
            out.append(f"v_fma_f32 v{tt+1}, v{tt+1}, v{vR}, v{vC}")
        for r in range(4):
            x = vX + 4 * f + r
            tt = vTmp + 2 * r
            out.append(f"v_cvt_pk_bf16_f32 v{x}, v{tt}, v{tt+1}")
        return out

    def reads(n):
        out = []
        s, i = n // 4, n % 4
        slot = (s + 4) % NSLOT
        base = slot // 2
        off0 = (slot % 2) * SLOT
        buf = vW + (n % 2) * 28
        if s < 8:
            for t in range(7):
                pr = []
                for qq in range(2):
                    off = off0 + (8 * i + 4 * qq) * 224 + t * 32
                    pr.append(f"ds_read_b64_tr_b16 v[{buf+4*t+2*qq}:{buf+4*t+2*qq+1}], v{vRA+base} offset:{off}")
                out.append(pr)
        else:
            for t in range(3):
                pr = []
                for qq in range(2):
                    off = off0 + t * 4096 + (8 * i + 4 * qq) * 64
                    pr.append(f"ds_read_b64_tr_b16 v[{buf+4*t+2*qq}:{buf+4*t+2*qq+1}], v{vRB+base} offset:{off}")
                out.append(pr)
        return out

    stamp()
    for l in norm_frag(0):
        a(l)
    a(f"s_waitcnt vmcnt({q.wait(('st',0))}) lgkmcnt(0)")
    a("s_barrier")
    stamp()
    for pr in reads(0):
        for l in pr:
            a(l)

    sTb = 63
    a(f"s_mov_b32 s68, {1792*1024}")
    a(f"s_mov_b32 s69, {512*1024}")
    a(f"s_lshl_b32 s70, s2, 2")
    a(f"s_add_u32 s70, s70, s{sW}")
    a(f"s_cmp_lt_u32 s70, 256")
    a(f"s_mov_b32 s{SWS2}, s{SWS}")
    a(f"s_mov_b32 s{SWS2+1}, s{SWS+1}")
    a(f"s_cselect_b32 s{SWS2+2}, {WS_SIZE}, 0")
    a(f"s_mov_b32 s{SWS2+3}, 0x00020000")

    TSCR = 16384
    a(f"v_lshrrev_b32 v{vT0}, 2, v{vLane}")
    a(f"v_lshlrev_b32 v{vT0}, 10, v{vT0}")
    a(f"v_and_b32 v{vT1}, 3, v{vLane}")
    a(f"v_lshl_add_u32 v{vT0}, v{vT1}, 4, v{vT0}")
    a(f"v_lshlrev_b32 v{vT1}, 3, v{vT1}")
    a(f"v_bfe_u32 v{vTmp}, v{vLane}, 2, 2")
    a(f"v_lshl_add_u32 v{vT1}, v{vTmp}, 6, v{vT1}")
    a(f"v_bfe_u32 v{vTmp}, v{vLane}, 4, 1")
    a(f"v_lshl_add_u32 v{vT1}, v{vTmp}, 5, v{vT1}")
    a(f"v_lshrrev_b32 v{vTmp}, 5, v{vLane}")
    a(f"v_lshl_add_u32 v{vT1}, v{vTmp}, 8, v{vT1}")
    a(f"s_lshl_b32 s71, s{sW}, 10")
    a(f"s_add_u32 s71, s71, {TSCR}")
    a(f"v_add_u32 v{vT1}, s71, v{vT1}")

    def t_loads(rr):
        o = []
        o.append(f"s_add_u32 s{sTmp2}, s70, {rr*1024}")
        o.append(f"s_lshr_b32 s{sTmp3}, s{sTmp2}, 4")
        o.append(f"s_and_b32 s{sTmp2}, s{sTmp2}, 15")
        o.append(f"s_mul_i32 s{sTb}, s{sTmp2}, 144")
        o.append(f"s_add_u32 s{sTb}, s{sTb}, s{sTmp3}")
        o.append(f"s_lshl_b32 s{sTb}, s{sTb}, 10")
        o.append(f"s_add_u32 s{sTb}, s{sTb}, {WS_WF}")
        o.append(f"s_cmp_lt_u32 s{sTmp3}, 112")
        o.append(f"s_cselect_b32 s{ST}, s50, s48")
        o.append(f"s_cselect_b32 s{ST+1}, s51, s49")
        o.append(f"s_cselect_b32 s{ST+2}, s68, s69")
        o.append(f"s_cselect_b32 s66, 0, 112")
        o.append(f"s_and_b32 s{ST+1}, s{ST+1}, 0xffff")
        o.append(f"s_mov_b32 s{ST+3}, 0x00020000")
        o.append(f"s_sub_u32 s{sTmp3}, s{sTmp3}, s66")
        o.append(f"s_lshl_b32 s{sTmp3}, s{sTmp3}, 14")
        o.append(f"s_mov_b32 m0, s71")
        o.append(f"s_lshl_b32 s{sTmp2}, s{sTmp2}, 6")
        o.append(f"s_add_u32 s{sTmp3}, s{sTmp3}, s{sTmp2}")
        o.append(f"buffer_load_dwordx4 v{vT0}, s[{ST}:{ST+3}], s{sTmp3} offen lds")
        return o

    vTD = vW + 48
    def t_store(rr):
        sd = SWS2 if rr == 2 else SWS
        o = []
        o.append(f"ds_read_b64_tr_b16 v[{vTD}:{vTD+1}], v{vT1}")
        o.append(f"ds_read_b64_tr_b16 v[{vTD+2}:{vTD+3}], v{vT1} offset:512")
        o.append("s_waitcnt lgkmcnt(0)")
        o.append(f"buffer_store_dwordx4 v[{vTD}:{vTD+3}], v{vL16}, s[{sd}:{sd+3}], s{sTb} offen")
        return o

    def mlp_epi(t):
        out = []
        H = vE + 12
        for grp in range(2):
            G, U, X = vE, vE + 4, vE + 8
            rs = range(4)
            for r in rs:
                out.append(f"v_accvgpr_read_b32 v{G+r}, a{aM+16*t+4*grp+r}")
            for r in rs:
                out.append(f"v_accvgpr_read_b32 v{U+r}, a{aM+16*t+8+4*grp+r}")
            for r in rs:
                out.append(f"v_mul_f32 v{X+r}, v{G+r}, v{G+r}")
            for r in rs:
                out.append(f"v_fma_f32 v{X+r}, v{X+r}, v{vK2}, v{vK1}")
            for r in rs:
                out.append(f"v_mul_f32 v{X+r}, v{G+r}, v{X+r}")
            for r in rs:
                out.append(f"v_exp_f32 v{X+r}, v{X+r}")
            for r in rs:
                out.append(f"v_mul_f32 v{U+r}, v{G+r}, v{U+r}")
            for r in rs:
                out.append(f"v_add_f32 v{X+r}, 1.0, v{X+r}")
            for r in rs:
                out.append(f"v_rcp_f32 v{X+r}, v{X+r}")
            out.append("s_nop 0")
            for r in rs:
                out.append(f"v_mul_f32 v{H+4*grp+r}, v{U+r}, v{X+r}")
        P = vE + 20 + 4 * (t % 2)
        for r in range(4):
            out.append(f"v_cvt_pk_bf16_f32 v{P+r}, v{H+2*r}, v{H+2*r+1}")
        out.append(f"buffer_store_dwordx4 v[{P}:{P+3}], v{vL16}, s[{SWS}:{SWS+3}], s{sHoff} offen offset:{t*1024}")
        return out

    a(f"s_mul_i32 s{sHoff}, s{sRT}, 112")
    a(f"s_mul_i32 s{sTmp}, s{sCB}, 7")
    a(f"s_add_u32 s{sHoff}, s{sHoff}, s{sTmp}")
    a(f"s_lshl_b32 s{sHoff}, s{sHoff}, 10")
    a(f"s_add_u32 s{sHoff}, s{sHoff}, {WS_H}")
    sHoff2 = 67
    a(f"s_add_u32 s{sHoff2}, s{sHoff}, 4096")

    epi = []
    for t in range(7):
        e = mlp_epi(t)
        if t >= 4:
            e[-1] = e[-1].replace(f"s{sHoff} offen offset:{t*1024}", f"s{sHoff2} offen offset:{(t-4)*1024}")
        epi += e
    nB = 32 * 3
    epi_pos = 0

    for n in range(64):
        s, i = n // 4, n % 4
        nt = 7 if s < 8 else 3
        buf = vW + (n % 2) * 28
        nxt = reads(n + 1) if n + 1 < 64 else None
        pre = []
        post_dma = []
        if i == 3 and s + 1 < 16:
            pre.append(f"s_waitcnt vmcnt({q.wait(('st', s+1))})")
            pre.append("s_barrier")
            if s + 4 < 16:
                post_dma = dma_stage(s + 4)
                post_tag = s + 4
        if n in (8, 16, 32, 48):
            stamp()
        if n in (0, 5):
            post_tag = 2 if n == 0 else 3
            post_dma = dma_stage(post_tag)
        for l in pre:
            a(l)
        fill = []
        if s < 8 and n + 1 < 32:
            fill = norm_frag(n + 1)
        if n in (36, 44, 52):
            for l in t_loads((n - 36) // 8):
                a(l)
                if l.startswith("buffer"):
                    q.issue("T")
        if n in (42, 50, 58):
            a(f"s_waitcnt vmcnt({q.wait('T')})")
            for l in t_store((n - 42) // 8):
                a(l)
                if l.startswith("buffer"):
                    q.issue()
        nrd_next = 0 if nxt is None else len(nxt)
        dma_groups = []
        if post_dma:
            cur = []
            for l in post_dma:
                cur.append(l)
                if l.startswith("buffer_load"):
                    dma_groups.append(cur)
                    cur = []
        fi = 0
        for t in range(nt):
            issued_next = min(t, nrd_next) if nxt is not None else 0
            if t % 2 == 0:
                tl = min(t + 1, nt - 1)
                cnt = 2 * (nt - 1 - tl) + 2 * issued_next
                a(f"s_waitcnt lgkmcnt({cnt})")
            X = f"v[{vX+4*(n%32)}:{vX+4*(n%32)+3}]"
            Wf = f"v[{buf+4*t}:{buf+4*t+3}]"
            if s < 8:
                acc = f"a[{aM+16*t}:{aM+16*t+15}]"
                cc = "0" if n == 0 else acc
                a(f"v_mfma_f32_32x32x16_bf16 {acc}, {Wf}, {X}, {cc}")
            else:
                acc = f"a[{aQ+16*t}:{aQ+16*t+15}]"
                cc = "0" if n == 32 else acc
                if t < 2:
                    a(f"v_mfma_f32_32x32x16_bf16 {acc}, {Wf}, {X}, {cc}")
                else:
                    a(f"v_mfma_f32_32x32x16_bf16 {acc}, {X}, {Wf}, {cc}")
            if nxt is not None and t < nrd_next:
                for l in nxt[t]:
                    a(l)
            if dma_groups:
                per = (len(dma_groups) + (nt - t) - 1) // (nt - t)
                for _ in range(per):
                    if dma_groups:
                        for l in dma_groups.pop(0):
                            a(l)
            if fill:
                tgt = min(len(fill), (len(fill) * (t + 1) + nt - 2) // (nt - 1))
                while fi < tgt:
                    a(fill[fi]); fi += 1
            if s >= 8:
                idx = (n - 32) * 3 + t
                if idx >= 4:
                    tgt = (len(epi) * (idx - 3) + (nB - 8) - 1) // (nB - 8)
                    tgt = min(tgt, len(epi))
                    while epi_pos < tgt:
                        l = epi[epi_pos]
                        a(l)
                        if l.startswith("buffer_store"):
                            q.issue()
                        epi_pos += 1
        if post_dma:
            q.issue(("st", post_tag), dma_count(post_tag))
    assert epi_pos == len(epi)

    stamp()
    a(f"s_lshl_b32 s{sQoff}, s{sCB}, 7")
    a(f"s_add_u32 s{sQoff}, s{sQoff}, s{sRT}")
    a(f"s_lshl_b32 s{sQoff}, s{sQoff}, 10")
    a(f"s_add_u32 s{sVoff}, s{sQoff}, {WS_V}")
    a(f"s_add_u32 s{sTmp}, s{sQoff}, 65536")
    a(f"s_add_u32 s{sTmp2}, s{sQoff}, {WS_K}")
    a(f"s_add_u32 s{sTmp3}, s{sQoff}, {WS_K+65536}")
    a(f"s_mov_b32 s66, {hex(f2u(QSCALE))}")
    a("s_nop 7")
    T = vTmp
    for t in range(3):
        for half in range(2):
            for r in range(8):
                a(f"v_accvgpr_read_b32 v{T+r}, a{aQ+16*t+8*half+r}")
            if t == 0:
                for r in range(8):
                    a(f"v_mul_f32 v{T+r}, s66, v{T+r}")
            P = vE + 4 * ((2 * t + half) % 4)
            for r in range(4):
                a(f"v_cvt_pk_bf16_f32 v{P+r}, v{T+2*r}, v{T+2*r+1}")
            if t == 0:
                so = sQoff if half == 0 else sTmp
                a(f"buffer_store_dwordx4 v[{P}:{P+3}], v{vL16}, s[{SWS}:{SWS+3}], s{so} offen")
            elif t == 1:
                so = sTmp2 if half == 0 else sTmp3
                a(f"buffer_store_dwordx4 v[{P}:{P+3}], v{vL16}, s[{SWS}:{SWS+3}], s{so} offen")
            else:
                a(f"buffer_store_dwordx4 v[{P}:{P+3}], v{vVoff}, s[{SWS}:{SWS+3}], s{sVoff} offen offset:{half*512}")
    if stamps:
        stamp()
        wg_end(a, SWS, 0, 4, 92)
        a("s_load_dwordx2 s[40:41], s[0:1], 64")
        a("s_waitcnt lgkmcnt(0)")
        a("s_mov_b32 s42, 256")
        a("s_mov_b32 s43, 0x00020000")
        a("s_cmp_lg_u32 s2, 0")
        a(f"s_cbranch_scc1 {name}_end")
        a("s_cmp_lg_u32 s3, 0")
        a(f"s_cbranch_scc1 {name}_end")
        a("v_mov_b32 v1, 0")
        for i in range(st_n[0]):
            a(f"v_mov_b32 v2, s{72+2*i}")
            a(f"buffer_store_dword v2, v1, s[40:43], 0 offen offset:{4*i}")
    a.label(f"{name}_end")
    a("s_endpgm")
    errs = a.finish(name)
    desc = f"""
.amdhsa_kernel {name}
  .amdhsa_next_free_vgpr 416
  .amdhsa_next_free_sgpr 102
  .amdhsa_accum_offset 256
  .amdhsa_group_segment_fixed_size 0
  .amdhsa_kernarg_size 80
  .amdhsa_user_sgpr_count 2
  .amdhsa_user_sgpr_kernarg_segment_ptr 1
  .amdhsa_system_sgpr_workgroup_id_x 1
.end_amdhsa_kernel
"""
    return desc, K1_LDS
```

```python
from asmlib import *
from k1 import WS_Q, WS_K, WS_V, WS_O, WS_G, WS_WF, WS_H, WS_SIZE, f2u

K2_LDS = 131072
OFFSET = 40.0
T0 = 8


import os
def gen_k2(a, name, stamps=False):
    NOGEMM = bool(os.environ.get('NOGEMM'))
    sW, sHead, sQB = 3, 4, 5
    SWS = 8
    sTmp, sTmp2, sTmp3 = 12, 13, 14
    sMaskV = 16
    sLoop = 18
    sOoff = 19
    sA, sB = 20, 21
    vLane, vL16, vKa, vVa = 1, 2, 3, 4
    vT = 5
    vQ = 12
    vK = 16
    vV = 24
    vP = 40
    vS = 48
    vC = 80
    vO = 96
    gA = 12
    gB = 44
    gAcc = 80
    gT = 96

    a.raw(f".p2align 8\n.globl {name}\n.type {name},@function\n{name}:")
    a("s_cmp_ge_u32 s2, 256")
    a(f"s_cbranch_scc1 {name}_end")
    if stamps:
        wg_begin(a, 40)
    a("""
    s_load_dwordx2 s[6:7], s[0:1], 72
    v_lshrrev_b32 v2, 6, v0
    v_and_b32 v1, 63, v0
    s_nop 0
    v_readfirstlane_b32 s3, v2
    s_and_b32 s4, s2, 31
    s_lshr_b32 s5, s2, 5
    """)
    a(f"v_lshlrev_b32 v{vL16}, 4, v{vLane}")
    a("s_waitcnt lgkmcnt(0)")
    a(f"s_mov_b32 s{SWS}, s6")
    a(f"s_and_b32 s{SWS+1}, s7, 0xffff")
    a(f"s_mov_b32 s{SWS+2}, {WS_SIZE}")
    a(f"s_mov_b32 s{SWS+3}, 0x00020000")
    if os.environ.get("DUP16"):
        a(f"s_and_b32 s{sW}, s{sW}, 7")
    a(f"s_cmp_ge_u32 s{sW}, 8")
    a(f"s_cbranch_scc1 {name}_gemm")

    a(f"s_lshl_b32 s{sTmp}, s{sHead}, 16")
    a(f"s_lshl_b32 s{sTmp2}, s{sW}, 10")
    a(f"s_add_u32 s{sTmp}, s{sTmp}, s{sTmp2}")
    a(f"s_add_u32 s{sTmp3}, s{sTmp}, {WS_K}")
    a(f"s_mov_b32 m0, s{sTmp2}")
    a("s_nop 0")
    a(f"buffer_load_dwordx4 v{vL16}, s[{SWS}:{SWS+3}], s{sTmp3} offen lds")
    a(f"s_add_u32 s{sTmp3}, s{sTmp}, {WS_V}")
    a(f"s_add_u32 m0, s{sTmp2}, 65536")
    a("s_nop 0")
    a(f"buffer_load_dwordx4 v{vL16}, s[{SWS}:{SWS+3}], s{sTmp3} offen lds")
    a(f"s_lshl_b32 s{sOoff}, s{sQB}, 3")
    a(f"s_add_u32 s{sOoff}, s{sOoff}, s{sW}")
    a(f"s_lshl_b32 s{sTmp3}, s{sHead}, 6")
    a(f"s_add_u32 s{sTmp3}, s{sTmp3}, s{sOoff}")
    a(f"s_lshl_b32 s{sTmp3}, s{sTmp3}, 10")
    a(f"buffer_load_dwordx4 v[{vQ}:{vQ+3}], v{vL16}, s[{SWS}:{SWS+3}], s{sTmp3} offen")
    for i in range(1, 8):
        a(f"s_add_u32 s{sTmp3}, s{sTmp}, {WS_K + i*8192}")
        a(f"s_add_u32 m0, s{sTmp2}, {i*8192}")
        a("s_nop 0")
        a(f"buffer_load_dwordx4 v{vL16}, s[{SWS}:{SWS+3}], s{sTmp3} offen lds")
        a(f"s_add_u32 s{sTmp3}, s{sTmp}, {WS_V + i*8192}")
        a(f"s_add_u32 m0, s{sTmp2}, {65536 + i*8192}")
        a("s_nop 0")
        a(f"buffer_load_dwordx4 v{vL16}, s[{SWS}:{SWS+3}], s{sTmp3} offen lds")
    a(f"s_lshl_b32 s{sOoff}, s{sOoff}, 5")
    a(f"s_add_u32 s{sOoff}, s{sOoff}, s{sHead}")
    a(f"s_lshl_b32 s{sOoff}, s{sOoff}, 10")
    a(f"s_add_u32 s{sOoff}, s{sOoff}, {WS_O}")
    a(f"s_mov_b32 s{sMaskV}, 0x0000ffff")
    a(f"s_mov_b32 s{sMaskV+1}, 0x0000ffff")
    a(f"v_mov_b32 v{vKa}, v{vL16}")
    a(f"v_lshrrev_b32 v{vT}, 5, v{vLane}")
    a(f"v_and_b32 v{vT+1}, 15, v{vLane}")
    a(f"v_lshlrev_b32 v{vVa}, 8, v{vT}")
    a(f"v_lshl_add_u32 v{vVa}, v{vT+1}, 4, v{vVa}")
    a(f"v_add_u32 v{vVa}, 65536, v{vVa}")
    a(f"v_and_b32 v{vT}, 31, v{vLane}")
    a(f"v_and_b32 v{vT+1}, 27, v{vT}")
    a(f"v_mov_b32 v{vT+2}, 0x3f803f80")
    a(f"v_cmp_eq_u32 vcc, 16, v{vT+1}")
    a("s_nop 1")
    a(f"v_cndmask_b32 v{vT}, 0, v{vT+2}, vcc")
    for r in range(16):
        a(f"v_mov_b32 v{vV+r}, v{vT}")
    for r in range(16):
        a(f"v_mov_b32 v{vO+r}, 0")
    a("s_waitcnt vmcnt(14)")
    a("s_barrier")
    if stamps:
        a("s_memtime s[50:51]")

    mx = vT
    for t in range(T0):
        a(f"ds_read_b128 v[{vK+4*(t%2)}:{vK+4*(t%2)+3}], v{vKa} offset:{t*1024}")
        if t >= 1:
            pass
        a("s_waitcnt lgkmcnt(0)")
        S = vS + 16 * (t % 2)
        a(f"v_mfma_f32_32x32x16_bf16 v[{S}:{S+15}], v[{vK+4*(t%2)}:{vK+4*(t%2)+3}], v[{vQ}:{vQ+3}], 0")
        if t >= 1:
            Sp = vS + 16 * ((t - 1) % 2)
            a("s_nop 8")
            for r in range(0, 16, 2):
                c = f"v{Sp+r}" if (t == 1 and r == 0) else f"v{mx}"
                a(f"v_max3_f32 v{mx}, v{Sp+r}, v{Sp+r+1}, {c}")
    Sp = vS + 16 * ((T0 - 1) % 2)
    a("s_nop 7")
    a("s_nop 3")
    for r in range(0, 16, 2):
        a(f"v_max3_f32 v{mx}, v{Sp+r}, v{Sp+r+1}, v{mx}")
    a(f"""
    s_nop 0
    v_mov_b32 v{mx+1}, v{mx}
    s_nop 1
    v_permlane32_swap_b32 v{mx}, v{mx+1}
    s_nop 1
    v_max_f32 v{mx}, v{mx}, v{mx+1}
    v_add_f32 v{mx}, {hex(f2u(OFFSET))}, v{mx}
    v_sub_f32 v{mx}, 0, v{mx}
    """)
    a(f"ds_read_b128 v[{vK}:{vK+3}], v{vKa} offset:0")
    a(f"ds_read_b128 v[{vK+4}:{vK+7}], v{vKa} offset:1024")
    a(f"s_mov_b64 exec, s[{sMaskV}:{sMaskV+1}]")
    a(f"ds_read_b128 v[{vV}:{vV+3}], v{vVa} offset:0")
    a(f"ds_read_b128 v[{vV+4}:{vV+7}], v{vVa} offset:512")
    a("s_mov_b64 exec, -1")
    for r in range(16):
        a(f"v_mov_b32 v{vC+r}, v{mx}")
    a("s_nop 0")
    a("s_waitcnt lgkmcnt(0)")
    a(f"v_mfma_f32_32x32x16_bf16 v[{vS}:{vS+15}], v[{vK}:{vK+3}], v[{vQ}:{vQ+3}], v[{vC}:{vC+15}]")
    a("s_nop 7")
    a("s_nop 3")

    XF = os.environ.get("XF", "")
    a_real = a
    def tile(j, barrier=False):
        def a(l):
            if "P" in XF and l.startswith("v_mfma") and f"v[{vO}:" in l.split(",")[0]:
                return
            if "S" in XF and l.startswith("v_mfma") and f"v[{vO}:" not in l.split(",")[0]:
                return
            if "L" in XF and (l.startswith("ds_read") or "exec" in l):
                return
            if "E" in XF and l.startswith("v_exp"):
                return
            if "C" in XF and l.startswith("v_cvt"):
                return
            a_real(l)
        cur, nxt = j % 2, 1 - j % 2
        S = vS + 16 * cur
        Sn = vS + 16 * nxt
        if barrier:
            a("s_waitcnt vmcnt(0)")
            a("s_barrier")
        a("s_waitcnt lgkmcnt(0)")
        a(f"v_mfma_f32_32x32x16_bf16 v[{Sn}:{Sn+15}], v[{vK+4*nxt}:{vK+4*nxt+3}], v[{vQ}:{vQ+3}], v[{vC}:{vC+15}]")
        a(f"ds_read_b128 v[{vK+4*cur}:{vK+4*cur+3}], v{vKa} offset:{(j+2)*1024}")
        a(f"s_mov_b64 exec, s[{sMaskV}:{sMaskV+1}]")
        a(f"ds_read_b128 v[{vV+8*nxt}:{vV+8*nxt+3}], v{vVa} offset:{(j+1)*1024}")
        a(f"ds_read_b128 v[{vV+8*nxt+4}:{vV+8*nxt+7}], v{vVa} offset:{(j+1)*1024+512}")
        a("s_mov_b64 exec, -1")
        for r in range(8):
            a(f"v_exp_f32 v{S+r}, v{S+r}")
        for r in range(4):
            a(f"v_cvt_pk_bf16_f32 v{vP+r}, v{S+2*r}, v{S+2*r+1}")
        for r in range(8, 10):
            a(f"v_exp_f32 v{S+r}, v{S+r}")
        a(f"v_mfma_f32_32x32x16_bf16 v[{vO}:{vO+15}], v[{vV+8*cur}:{vV+8*cur+3}], v[{vP}:{vP+3}], v[{vO}:{vO+15}]")
        for r in range(10, 16):
            a(f"v_exp_f32 v{S+r}, v{S+r}")
        for r in range(4, 8):
            a(f"v_cvt_pk_bf16_f32 v{vP+r}, v{S+2*r}, v{S+2*r+1}")
        a("s_nop 1")
        a(f"v_mfma_f32_32x32x16_bf16 v[{vO}:{vO+15}], v[{vV+8*cur+4}:{vV+8*cur+7}], v[{vP+4}:{vP+7}], v[{vO}:{vO+15}]")

    for j in range(8):
        tile(j, barrier=(j == 5))
    a(f"v_add_u32 v{vKa}, 8192, v{vKa}")
    a(f"v_add_u32 v{vVa}, 8192, v{vVa}")
    if stamps:
        a("s_memtime s[52:53]")
    a(f"s_mov_b32 s{sLoop}, 7")
    a.label(f"{name}_aloop")
    m = a.mark()
    for j in range(8):
        tile(j)
    a(f"v_add_u32 v{vKa}, 8192, v{vKa}")
    a(f"v_add_u32 v{vVa}, 8192, v{vVa}")
    a(f"s_sub_u32 s{sLoop}, s{sLoop}, 1")
    a(f"s_cmp_lg_u32 s{sLoop}, 0")
    a(f"s_cbranch_scc1 {name}_aloop")
    a.check_loop(m, name + "_aloop")
    if stamps:
        a("s_memtime s[54:55]")
        a("s_waitcnt lgkmcnt(0)")
        a("s_load_dwordx2 s[56:57], s[0:1], 64")
        a("s_waitcnt lgkmcnt(0)")
        a("s_mov_b32 s58, 256")
        a("s_mov_b32 s59, 0x00020000")
        a("s_lshl_b32 s60, s3, 4")
        a(f"v_mov_b32 v{vT+1}, s40")
        a(f"v_mov_b32 v{vT+2}, s50")
        a(f"v_mov_b32 v{vT+3}, s52")
        a(f"v_mov_b32 v{vT+4}, s54")
        a(f"v_mov_b32 v{vT+5}, 0")
        a("s_cmp_lg_u32 s2, 0")
        a(f"s_cbranch_scc1 {name}_nost")
        a(f"buffer_store_dwordx4 v[{vT+1}:{vT+4}], v{vT+5}, s[56:59], s60 offen")
        a.label(f"{name}_nost")
    a("s_nop 7")
    a("s_nop 7")
    a(f"v_mov_b32 v{vT}, {hex(f2u(2.0**100))}")
    a(f"v_cmp_lt_f32 vcc, v{vO+8}, v{vT}")
    a("s_nop 1")
    a("s_cmp_eq_u64 vcc, -1")
    a(f"s_cbranch_scc0 {name}_slow")
    a.label(f"{name}_fin")
    a(f"v_rcp_f32 v{vT}, v{vO+8}")
    a("s_nop 0")
    for r in range(8):
        a(f"v_mul_f32 v{vO+r}, v{vO+r}, v{vT}")
    for r in range(4):
        a(f"v_cvt_pk_bf16_f32 v{vP+r}, v{vO+2*r}, v{vO+2*r+1}")
    a(f"buffer_store_dwordx4 v[{vP}:{vP+3}], v{vL16}, s[{SWS}:{SWS+3}], s{sOoff} offen")
    if stamps:
        wg_end(a, SWS, 1, 4, 40)
    a("s_endpgm")

    a.label(f"{name}_slow")
    mrun, mnew, al = vT, vT + 1, vT + 2
    a(f"v_mov_b32 v{vKa}, v{vL16}")
    a(f"v_add_u32 v{vVa}, {-65536 & 0xffffffff}, v{vVa}")
    a(f"v_mov_b32 v{mrun}, {hex(f2u(-3.0e38))}")
    for r in range(16):
        a(f"v_mov_b32 v{vO+r}, 0")
    a(f"s_mov_b32 s{sLoop}, 64")
    a.label(f"{name}_sloop")
    m = a.mark()
    S = vS
    a(f"ds_read_b128 v[{vK}:{vK+3}], v{vKa}")
    a(f"s_mov_b64 exec, s[{sMaskV}:{sMaskV+1}]")
    a(f"ds_read_b128 v[{vV}:{vV+3}], v{vVa}")
    a(f"ds_read_b128 v[{vV+4}:{vV+7}], v{vVa} offset:512")
    a("s_mov_b64 exec, -1")
    a("s_waitcnt lgkmcnt(0)")
    a(f"v_mfma_f32_32x32x16_bf16 v[{S}:{S+15}], v[{vK}:{vK+3}], v[{vQ}:{vQ+3}], 0")
    a("s_nop 7")
    a("s_nop 7")
    a(f"v_mov_b32 v{mnew}, v{mrun}")
    for r in range(0, 16, 2):
        a(f"v_max3_f32 v{mnew}, v{S+r}, v{S+r+1}, v{mnew}")
    a(f"""
    s_nop 0
    v_mov_b32 v{al}, v{mnew}
    s_nop 1
    v_permlane32_swap_b32 v{mnew}, v{al}
    s_nop 1
    v_max_f32 v{mnew}, v{mnew}, v{al}
    v_sub_f32 v{al}, v{mrun}, v{mnew}
    v_exp_f32 v{al}, v{al}
    v_mov_b32 v{mrun}, v{mnew}
    """)
    for r in range(16):
        a(f"v_sub_f32 v{S+r}, v{S+r}, v{mnew}")
    for r in range(16):
        a(f"v_exp_f32 v{S+r}, v{S+r}")
    for r in range(16):
        a(f"v_mul_f32 v{vO+r}, v{vO+r}, v{al}")
    for r in range(8):
        a(f"v_cvt_pk_bf16_f32 v{vP+r}, v{S+2*r}, v{S+2*r+1}")
    a("s_nop 1")
    a(f"v_mfma_f32_32x32x16_bf16 v[{vO}:{vO+15}], v[{vV}:{vV+3}], v[{vP}:{vP+3}], v[{vO}:{vO+15}]")
    a(f"v_mfma_f32_32x32x16_bf16 v[{vO}:{vO+15}], v[{vV+4}:{vV+7}], v[{vP+4}:{vP+7}], v[{vO}:{vO+15}]")
    a(f"v_add_u32 v{vKa}, 1024, v{vKa}")
    a(f"v_add_u32 v{vVa}, 1024, v{vVa}")
    a("s_nop 7")
    a("s_nop 7")
    a(f"s_sub_u32 s{sLoop}, s{sLoop}, 1")
    a(f"s_cmp_lg_u32 s{sLoop}, 0")
    a(f"s_cbranch_scc1 {name}_sloop")
    a.check_loop(m, name + "_sloop")
    a(f"s_branch {name}_fin")

    a.label(f"{name}_gemm")
    if NOGEMM:
        a("s_barrier")
        a("s_barrier")
        a("s_endpgm")
    a(f"s_mov_b32 s25, s{sW}")
    a(f"s_sub_u32 s{sW}, s{sW}, 8")
    a(f"s_and_b32 s{sTmp}, s2, 7")
    a(f"s_lshl_b32 s{sTmp}, s{sTmp}, 2")
    a(f"s_bfe_u32 s{sTmp2}, s2, 0x20003")
    a(f"s_add_u32 s{sTmp}, s{sTmp}, s{sTmp2}")
    a(f"s_lshl_b32 s{sTmp}, s{sTmp}, 1")
    a(f"s_lshr_b32 s{sTmp2}, s{sW}, 1")
    a(f"s_add_u32 s{sTmp}, s{sTmp}, s{sTmp2}")
    a(f"s_lshr_b32 s{sTmp2}, s2, 5")
    a(f"s_lshl_b32 s{sTmp2}, s{sTmp2}, 1")
    a(f"s_and_b32 s{sTmp3}, s{sW}, 1")
    a(f"s_add_u32 s{sTmp2}, s{sTmp2}, s{sTmp3}")
    a(f"s_mul_i32 s{sA}, s{sTmp2}, {144*1024}")
    a(f"s_add_u32 s{sA}, s{sA}, {WS_WF}")
    a(f"s_mul_i32 s{sB}, s{sTmp}, {112*1024}")
    a(f"s_add_u32 s{sB}, s{sB}, {WS_H}")
    a(f"s_lshl_b32 s{sOoff}, s{sTmp}, 4")
    a(f"s_add_u32 s{sOoff}, s{sOoff}, s{sTmp2}")
    a(f"s_lshl_b32 s{sOoff}, s{sOoff}, 11")
    a(f"s_add_u32 s{sOoff}, s{sOoff}, {WS_G}")
    sA2, sB2 = 22, 23

    def gload(k):
        sa, sb = (sA, sB) if k < 4 else (sA2, sB2)
        a(f"buffer_load_dwordx4 v[{gA+4*k}:{gA+4*k+3}], v{vL16}, s[{SWS}:{SWS+3}], s{sa} offen offset:{(k%4)*1024}")
        a(f"buffer_load_dwordx4 v[{gB+4*k}:{gB+4*k+3}], v{vL16}, s[{SWS}:{SWS+3}], s{sb} offen offset:{(k%4)*1024}")

    def adv():
        a(f"s_add_u32 s{sA}, s{sA}, 8192")
        a(f"s_add_u32 s{sB}, s{sB}, 8192")
        a(f"s_add_u32 s{sA2}, s{sA2}, 8192")
        a(f"s_add_u32 s{sB2}, s{sB2}, 8192")

    a(f"s_add_u32 s{sA2}, s{sA}, 4096")
    a(f"s_add_u32 s{sB2}, s{sB}, 4096")
    for k in range(8):
        gload(k)
    adv()
    a("s_barrier")
    acc = f"v[{gAcc}:{gAcc+15}]"

    def gblock(first=False, last=False):
        for k in range(8):
            n = 14 - 2 * k if last else 14
            a(f"s_waitcnt vmcnt({n})")
            cc = "0" if (first and k == 0) else acc
            a(f"v_mfma_f32_32x32x16_bf16 {acc}, v[{gA+4*k}:{gA+4*k+3}], v[{gB+4*k}:{gB+4*k+3}], {cc}")
            if not last:
                gload(k)
        if not last:
            adv()

    gblock(first=True)
    a("s_barrier")
    a(f"s_mov_b32 s{sLoop}, 12")
    a.label(f"{name}_gloop")
    m = a.mark()
    gblock()
    a(f"s_sub_u32 s{sLoop}, s{sLoop}, 1")
    a(f"s_cmp_lg_u32 s{sLoop}, 0")
    a(f"s_cbranch_scc1 {name}_gloop")
    a.check_loop(m, name + "_gloop")
    gblock(last=True)
    a(f"s_mov_b32 s{sTmp}, {hex(f2u(-1.4426950408889634))}")
    a("s_nop 7")
    a("s_nop 3")
    X = gT
    for r in range(16):
        a(f"v_mul_f32 v{X+r}, s{sTmp}, v{gAcc+r}")
    for r in range(16):
        a(f"v_exp_f32 v{X+r}, v{X+r}")
    for r in range(16):
        a(f"v_add_f32 v{X+r}, 1.0, v{X+r}")
    for r in range(16):
        a(f"v_rcp_f32 v{X+r}, v{X+r}")
    for r in range(16):
        a(f"v_mul_f32 v{X+r}, v{X+r}, v{gAcc+r}")
    for r in range(8):
        a(f"v_cvt_pk_bf16_f32 v{gA+r}, v{X+2*r}, v{X+2*r+1}")
    a(f"buffer_store_dwordx4 v[{gA}:{gA+3}], v{vL16}, s[{SWS}:{SWS+3}], s{sOoff} offen")
    a(f"buffer_store_dwordx4 v[{gA+4}:{gA+7}], v{vL16}, s[{SWS}:{SWS+3}], s{sOoff} offen offset:1024")
    if stamps:
        a(f"s_mov_b32 s{sW}, s25")
        wg_end(a, SWS, 1, 100, 40)
    a.label(f"{name}_end")
    a("s_endpgm")
    a.finish(name)
    desc = f"""
.amdhsa_kernel {name}
  .amdhsa_next_free_vgpr 112
  .amdhsa_next_free_sgpr 64
  .amdhsa_accum_offset 112
  .amdhsa_group_segment_fixed_size 0
  .amdhsa_kernarg_size 80
  .amdhsa_user_sgpr_count 2
  .amdhsa_user_sgpr_kernarg_segment_ptr 1
  .amdhsa_system_sgpr_workgroup_id_x 1
.end_amdhsa_kernel
"""
    return desc, K2_LDS
```

```python
from asmlib import *
from k1 import WS_Q, WS_K, WS_V, WS_O, WS_G, WS_WF, WS_H, WS_SIZE, f2u

K3_LDS = 4 * 4 * 4096


def gen_k3(a, name, stamps=False):
    sW = 3
    SWS, SX, SO = 8, 12, 16
    sTmp, sTmp2, sTmp3, sA, sB, sG, sXo, sRT0, sCT0 = 20, 21, 22, 23, 24, 25, 26, 32, 33
    vLane, vL16, vXo, vLd = 1, 2, 3, 36
    vG = 4
    vXv = 12
    vAcc = 40
    vA = 104
    vB = 168
    a.raw(f".p2align 8\n.globl {name}\n.type {name},@function\n{name}:")
    a("s_cmp_ge_u32 s2, 256")
    a(f"s_cbranch_scc1 {name}_end")
    if stamps:
        wg_begin(a, 40)
    a("""
    s_load_dwordx2 s[6:7], s[0:1], 72
    s_load_dwordx2 s[28:29], s[0:1], 0
    s_load_dwordx2 s[30:31], s[0:1], 56
    v_lshrrev_b32 v2, 6, v0
    v_and_b32 v1, 63, v0
    s_nop 0
    v_readfirstlane_b32 s3, v2
    """)
    a(f"v_lshlrev_b32 v{vL16}, 4, v{vLane}")
    a(f"s_and_b32 s{sRT0}, s2, 7")
    a(f"s_lshl_b32 s{sRT0}, s{sRT0}, 2")
    a(f"s_bfe_u32 s{sCT0}, s2, 0x20003")
    a(f"s_add_u32 s{sRT0}, s{sRT0}, s{sCT0}")
    a(f"s_lshl_b32 s{sRT0}, s{sRT0}, 1")
    a(f"s_lshr_b32 s{sCT0}, s2, 5")
    a(f"s_lshl_b32 s{sCT0}, s{sCT0}, 1")
    a(f"s_mul_i32 s{sA}, s{sCT0}, {144*1024}")
    a(f"s_lshl_b32 s{sTmp}, s{sW}, 13")
    a(f"s_add_u32 s{sA}, s{sA}, s{sTmp}")
    a(f"s_add_u32 s{sA}, s{sA}, {WS_WF + 112*1024}")
    a(f"s_lshl_b32 s{sB}, s{sRT0}, 15")
    a(f"s_add_u32 s{sB}, s{sB}, s{sTmp}")
    a(f"s_add_u32 s{sB}, s{sB}, {WS_O}")
    a(f"s_lshr_b32 s{sTmp}, s{sW}, 1")
    a(f"s_add_u32 s{sTmp}, s{sTmp}, s{sRT0}")
    a(f"s_and_b32 s{sTmp2}, s{sW}, 1")
    a(f"s_add_u32 s{sTmp2}, s{sTmp2}, s{sCT0}")
    a(f"s_lshl_b32 s{sG}, s{sTmp}, 4")
    a(f"s_add_u32 s{sG}, s{sG}, s{sTmp2}")
    a(f"s_lshl_b32 s{sG}, s{sG}, 11")
    a(f"s_add_u32 s{sG}, s{sG}, {WS_G}")
    a(f"s_lshl_b32 s{sXo}, s{sTmp}, 15")
    a(f"s_lshl_b32 s{sTmp3}, s{sTmp2}, 6")
    a(f"s_add_u32 s{sXo}, s{sXo}, s{sTmp3}")
    a(f"v_and_b32 v{vXo}, 31, v{vLane}")
    a(f"v_lshlrev_b32 v{vXo}, 10, v{vXo}")
    a(f"v_lshrrev_b32 v{vG}, 5, v{vLane}")
    a(f"v_lshl_add_u32 v{vXo}, v{vG}, 3, v{vXo}")
    a("s_waitcnt lgkmcnt(0)")
    if stamps:
        a("s_memtime s[50:51]")
    for d, lo, size in ((SWS, 6, WS_SIZE), (SX, 28, 2048 * 1024), (SO, 30, 2048 * 1024)):
        a(f"s_mov_b32 s{d}, s{lo}")
        a(f"s_and_b32 s{d+1}, s{lo+1}, 0xffff")
        a(f"s_mov_b32 s{d+2}, {size}")
        a(f"s_mov_b32 s{d+3}, 0x00020000")
    offs = [34, 35, 36, 37, 38, 39, 27, 7]
    a(f"s_add_u32 s34, s{sA}, 4096")
    a(f"s_add_u32 s35, s{sA}, {144*1024}")
    a(f"s_add_u32 s36, s{sA}, {144*1024+4096}")
    a(f"s_add_u32 s37, s{sB}, 4096")
    a(f"s_add_u32 s38, s{sB}, 32768")
    a(f"s_add_u32 s39, s{sB}, {32768+4096}")
    for k in range(8):
        lo = k < 4
        for (reg, so) in ((vA + 4 * k, sA if lo else 34), (vB + 4 * k, sB if lo else 37),
                          (vA + 32 + 4 * k, 35 if lo else 36), (vB + 32 + 4 * k, 38 if lo else 39)):
            a(f"buffer_load_dwordx4 v[{reg}:{reg+3}], v{vL16}, s[{SWS}:{SWS+3}], s{so} offen offset:{(k%4)*1024}")
    a(f"buffer_load_dwordx4 v[{vG}:{vG+3}], v{vL16}, s[{SWS}:{SWS+3}], s{sG} offen")
    a(f"buffer_load_dwordx4 v[{vG+4}:{vG+7}], v{vL16}, s[{SWS}:{SWS+3}], s{sG} offen offset:1024")
    for q4 in range(4):
        a(f"buffer_load_dwordx2 v[{vXv+2*q4}:{vXv+2*q4+1}], v{vXo}, s[{SX}:{SX+3}], s{sXo} offen offset:{q4*16}")
    a(f"s_lshl_b32 s{sTmp}, s{sW}, 12")
    a(f"v_add_u32 v{vLd}, s{sTmp}, v{vL16}")
    if stamps:
        a("s_memtime s[52:53]")
    for k in range(8):
        a(f"s_waitcnt vmcnt({4*(7-k) + 6})")
        if stamps and k == 0:
            a("s_memtime s[54:55]")
        if stamps and k == 7:
            a("s_memtime s[56:57]")
        for i in range(2):
            for j in range(2):
                acc = f"v[{vAcc+16*(2*i+j)}:{vAcc+16*(2*i+j)+15}]"
                cc = "0" if k == 0 else acc
                a(f"v_mfma_f32_32x32x16_bf16 {acc}, v[{vA+32*j+4*k}:{vA+32*j+4*k+3}], v[{vB+32*i+4*k}:{vB+32*i+4*k+3}], {cc}")
    a("s_nop 7")
    a("s_nop 3")
    for d in range(4):
        for qd in range(4):
            a(f"ds_write_b128 v{vLd}, v[{vAcc+16*d+4*qd}:{vAcc+16*d+4*qd+3}] offset:{d*16384 + qd*1024}")
    a("s_waitcnt lgkmcnt(0)")
    a("s_barrier")
    a(f"s_lshl_b32 s{sTmp}, s{sW}, 14")
    a(f"v_add_u32 v{vLd}, s{sTmp}, v{vL16}")
    R = vA
    for src in range(4):
        for qd in range(4):
            a(f"ds_read_b128 v[{R+16*src+4*qd}:{R+16*src+4*qd+3}], v{vLd} offset:{src*4096 + qd*1024}")
    a("s_mov_b32 s27, 0xffff0000")
    a("s_waitcnt vmcnt(0) lgkmcnt(0)")
    S = vAcc
    for r in range(16):
        a(f"v_add_f32 v{S+r}, v{R+r}, v{R+16+r}")
    for r in range(16):
        a(f"v_add_f32 v{R+32+r}, v{R+32+r}, v{R+48+r}")
    for r in range(16):
        a(f"v_add_f32 v{S+r}, v{S+r}, v{R+32+r}")
    T = vB
    for r in range(8):
        a(f"v_cvt_pk_bf16_f32 v{T+r}, v{S+2*r}, v{S+2*r+1}")
    for r in range(8):
        a(f"v_lshlrev_b32 v{S+2*r}, 16, v{T+r}")
        a(f"v_and_b32 v{S+2*r+1}, s27, v{T+r}")
        a(f"v_lshlrev_b32 v{T+8+2*r}, 16, v{vG+r}")
        a(f"v_and_b32 v{T+8+2*r+1}, s27, v{vG+r}")
    for r in range(16):
        a(f"v_mul_f32 v{S+r}, v{S+r}, v{T+8+r}")
    for r in range(8):
        a(f"v_cvt_pk_bf16_f32 v{T+r}, v{S+2*r}, v{S+2*r+1}")
    for r in range(8):
        a(f"v_lshlrev_b32 v{S+2*r}, 16, v{T+r}")
        a(f"v_and_b32 v{S+2*r+1}, s27, v{T+r}")
        a(f"v_lshlrev_b32 v{T+8+2*r}, 16, v{vXv+r}")
        a(f"v_and_b32 v{T+8+2*r+1}, s27, v{vXv+r}")
    for r in range(16):
        a(f"v_add_f32 v{S+r}, v{S+r}, v{T+8+r}")
    for r in range(8):
        a(f"v_cvt_pk_bf16_f32 v{T+r}, v{S+2*r}, v{S+2*r+1}")
    for q4 in range(4):
        a(f"buffer_store_dwordx2 v[{T+2*q4}:{T+2*q4+1}], v{vXo}, s[{SO}:{SO+3}], s{sXo} offen offset:{q4*16}", )
    if stamps:
        a("s_memtime s[58:59]")
        a("s_waitcnt lgkmcnt(0)")
        a("s_load_dwordx2 s[60:61], s[0:1], 64")
        a("s_waitcnt lgkmcnt(0)")
        a("s_mov_b32 s62, 256")
        a("s_mov_b32 s63, 0x00020000")
        a("v_mov_b32 v20, s40")
        a("v_mov_b32 v21, s50")
        a("v_mov_b32 v22, s52")
        a("v_mov_b32 v23, s54")
        a("v_mov_b32 v24, s56")
        a("v_mov_b32 v25, s58")
        a("v_mov_b32 v26, 0")
        a("v_mov_b32 v27, 0")
        a("s_lshl_b32 s20, s3, 5")
        a("s_cmp_lg_u32 s2, 77")
        a(f"s_cbranch_scc1 {name}_nost")
        a("buffer_store_dwordx4 v[20:23], v26, s[60:63], s20 offen")
        a("buffer_store_dwordx4 v[24:27], v26, s[60:63], s20 offen offset:16")
        a.label(f"{name}_nost")
        wg_end(a, SWS, 2, 4, 40)
    a.label(f"{name}_end")
    a("s_endpgm")
    a.finish(name)
    desc = f"""
.amdhsa_kernel {name}
  .amdhsa_next_free_vgpr 232
  .amdhsa_next_free_sgpr 64
  .amdhsa_accum_offset 232
  .amdhsa_group_segment_fixed_size 0
  .amdhsa_kernarg_size 80
  .amdhsa_user_sgpr_count 2
  .amdhsa_user_sgpr_kernarg_segment_ptr 1
  .amdhsa_system_sgpr_workgroup_id_x 1
.end_amdhsa_kernel
"""
    return desc, K3_LDS
```

```python
import sys, os
sys.path.insert(0, os.path.dirname(__file__))
from asmlib import *
import k1
NAME = "recurrent_scan__softmax_full_mha__glu_gated_geglu__prompt"
HDR = open("cdna_kernels/%s.s.ref" % NAME).read().split("; Override launch geometry")[0]

K2B = int(os.environ.get("K2B", "768"))
STAMPS = bool(os.environ.get("STAMPS"))
def build(which=("k1", "k2", "k3"), out=None):
    a = Asm()
    descs = []
    launches = []
    if "k1" in which:
        a.stflag = os.environ.get("ST1", "sc1")
        d, lds = k1.gen_k1(a, "k1_kernel", stamps=STAMPS); descs.append(d)
        launches.append(f"; @launch kernel=k1_kernel grid=(256,1,1) block=(256,1,1) lds={lds}")
    if "k2" in which:
        import k2
        a.stflag = os.environ.get("ST2", "sc1")
        d, lds = k2.gen_k2(a, "k2_kernel", stamps=STAMPS); descs.append(d)
        launches.append(f"; @launch kernel=k2_kernel grid=(256,1,1) block=({K2B},1,1) lds={lds}")
    if "k3" in which:
        import k3
        a.stflag = ""
        d, lds = k3.gen_k3(a, "k3_kernel", stamps=STAMPS); descs.append(d)
        launches.append(f"; @launch kernel=k3_kernel grid=(256,1,1) block=(256,1,1) lds={lds}")
    if a.errs:
        print("HAZARDS:", len(a.errs))
        for e in a.errs[:40]:
            print(e)
    txt = HDR + "\n".join(launches) + "\n"
    txt += '.amdgcn_target "amdgcn-amd-amdhsa--gfx950"\n.text\n'
    txt += a.text()
    txt += '.section .rodata,"a"\n.p2align 6\n' + "".join(descs)
    out = out or "cdna_kernels/%s.s" % NAME
    open(out, "w").write(txt)
    return out

if __name__ == "__main__":
    which = tuple(sys.argv[1].split(",")) if len(sys.argv) > 1 else ("k1", "k2", "k3")
    out = sys.argv[2] if len(sys.argv) > 2 else None
    print(build(which, out))
```

```python
from asmlib import *
from k1 import WS_Q, WS_K, WS_V, WS_O, WS_G, WS_WF, WS_H, WS_SIZE, QSCALE, f2u, VQ

XPITCH = 1040
SLOT = 20736
UPO = 7296
QO = 14592
SLOT6 = 128 * XPITCH
DUMMY = SLOT6 + SLOT
EXCH = DUMMY + 1024
TSCR = 6 * SLOT
K1B_LDS = EXCH + 2048


def slot_addr(s):
    k = (s + 6) % 7
    return SLOT6 if k == 6 else k * SLOT


def gen_k1b(a, name, stamps=False):
    sW, sRB, sCB, sRG, sCH, sRT = 3, 4, 5, 6, 7, 59
    SX, SWS, ST, SWS2 = 8, 12, 16, 20
    SD = 24
    sDl = 36
    sDs = 60
    sDst = 64
    sOnes, sMask = 67, 68
    sTmp, sTmp2, sTmp3, sTmp4 = 54, 55, 56, 57
    sHoff, sHoff2, sTb, sTbase, sTl = 70, 71, 72, 73, 74
    vLane, vL16, vXa, vVoff = 1, 2, 3, 4
    vD = 5
    vRM, vRQ = 8, 9
    vCM, vCQ = 10, 11
    vR, vC = 12, 13
    vTmp = 14
    vW = 22
    vX = 42
    vT0, vT1 = 170, 171
    vS = 172
    aA = 0

    st_n = [0]

    def stamp():
        if not stamps:
            return
        k = 76 + 2 * st_n[0]
        st_n[0] += 1
        a(f"s_memtime s[{k}:{k+1}]")
        a("s_waitcnt lgkmcnt(0)")

    q = VQ()
    a.raw(f".p2align 8\n.globl {name}\n.type {name},@function\n{name}:")
    a("s_cmp_ge_u32 s2, 256")
    a(f"s_cbranch_scc1 {name}_end")
    if stamps:
        wg_begin(a, 94)
    a("""
    s_load_dwordx4 s[40:43], s[0:1], 0
    s_load_dwordx4 s[44:47], s[0:1], 32
    s_load_dwordx2 s[48:49], s[0:1], 16
    s_load_dwordx2 s[50:51], s[0:1], 48
    s_load_dwordx2 s[52:53], s[0:1], 72
    v_lshrrev_b32 v2, 6, v0
    v_and_b32 v1, 63, v0
    s_nop 0
    v_readfirstlane_b32 s3, v2
    """)
    import os
    RM = os.environ.get("RMAP", "4")
    if RM == "4":
        a("""
    s_bfe_u32 s4, s2, 0x20001
    s_lshl_b32 s4, s4, 2
    s_lshr_b32 s5, s2, 6
    s_add_u32 s4, s4, s5
    s_and_b32 s5, s2, 1
    s_lshl_b32 s5, s5, 3
    s_bfe_u32 s6, s2, 0x30003
    s_add_u32 s5, s5, s6
    """)
    elif RM == "8":
        a("""
    s_bfe_u32 s4, s2, 0x10002
    s_lshl_b32 s4, s4, 3
    s_lshr_b32 s5, s2, 5
    s_add_u32 s4, s4, s5
    s_and_b32 s5, s2, 3
    s_lshl_b32 s5, s5, 2
    s_bfe_u32 s6, s2, 0x20003
    s_add_u32 s5, s5, s6
    """)
    else:
        a("""
    s_lshr_b32 s4, s2, 4
    s_and_b32 s5, s2, 15
    """)
    a("""
    s_and_b32 s6, s3, 3
    s_lshr_b32 s7, s3, 2
    """)
    a(f"s_mov_b32 s{sOnes}, 0x3f803f80")
    a(f"s_mov_b32 s{sMask}, 0xffff0000")
    a(f"s_lshl_b32 s{sRT}, s{sRB}, 2")
    a(f"s_add_u32 s{sRT}, s{sRT}, s{sRG}")
    a(f"v_lshlrev_b32 v{vL16}, 4, v{vLane}")
    t0, t1, t2, t3 = vTmp, vTmp + 1, vTmp + 2, vTmp + 3
    a(f"v_and_b32 v{t0}, 31, v{vLane}")
    a(f"v_lshrrev_b32 v{t1}, 5, v{vLane}")
    a(f"s_mul_i32 s{sTmp}, s{sRG}, {32*XPITCH}")
    a(f"v_mul_u32_u24 v{vXa}, {XPITCH}, v{t0}")
    a(f"v_lshl_add_u32 v{vXa}, v{t1}, 5, v{vXa}")
    a(f"v_add_u32 v{vXa}, s{sTmp}, v{vXa}")
    a(f"v_bfe_u32 v{t2}, v{vLane}, 4, 1")
    a(f"v_lshlrev_b32 v{vVoff}, 16, v{t2}")
    a(f"v_lshl_add_u32 v{vVoff}, v{t1}, 8, v{vVoff}")
    a(f"v_and_b32 v{t2}, 15, v{vLane}")
    a(f"v_lshl_add_u32 v{vVoff}, v{t2}, 4, v{vVoff}")
    a(f"v_bfe_u32 v{t2}, v{vLane}, 2, 2")
    a(f"v_lshl_add_u32 v{t2}, v{t1}, 4, v{t2}")
    a(f"v_and_b32 v{t3}, 3, v{vLane}")
    a(f"v_bfe_u32 v{t0}, v{vLane}, 4, 1")
    a(f"v_mul_u32_u24 v{vRM}, 224, v{t2}")
    a(f"v_lshl_add_u32 v{vRM}, v{t3}, 3, v{vRM}")
    a(f"v_mul_u32_u24 v{vRQ}, {UPO}, v{t0}")
    a(f"v_add_u32 v{vRM}, v{vRM}, v{vRQ}")
    a(f"v_lshlrev_b32 v{vRQ}, 6, v{t2}")
    a(f"v_lshl_add_u32 v{vRQ}, v{t3}, 3, v{vRQ}")
    a(f"v_lshl_add_u32 v{vRQ}, v{t0}, 5, v{vRQ}")
    a(f"v_add_u32 v{vRQ}, {QO}, v{vRQ}")
    a("s_waitcnt lgkmcnt(0)")

    def srd(d, lo, size):
        a(f"s_mov_b32 s{d}, s{lo}")
        a(f"s_and_b32 s{d+1}, s{lo+1}, 0xffff")
        a(f"s_mov_b32 s{d+2}, {size}")
        a(f"s_mov_b32 s{d+3}, 0x00020000")
    srd(SX, 40, 2048 * 1024)
    stamp()
    a(f"s_lshl_b32 s{sTmp}, s{sRB}, 17")
    a(f"s_lshl_b32 s{sTmp2}, s{sW}, 14")
    a(f"s_add_u32 s{sTmp}, s{sTmp}, s{sTmp2}")
    a(f"s_mul_i32 s{sTmp2}, s{sW}, {16*XPITCH}")
    for r in range(16):
        a(f"s_add_u32 m0, s{sTmp2}, {r*XPITCH}")
        a(f"s_add_u32 s{sTmp3}, s{sTmp}, {r*1024}")
        a(f"buffer_load_dwordx4 v{vL16}, s[{SX}:{SX+3}], s{sTmp3} offen lds")
        q.issue("x")
    srd(SWS, 52, WS_SIZE)

    for j in range(3):
        sP = sTmp
        a(f"s_add_u32 s{sP}, s{sW}, {8*j}")
        d = SD + 4 * j
        a(f"s_cmp_lt_u32 s{sP}, 7")
        a(f"s_cselect_b32 s{d}, s44, s46")
        a(f"s_cselect_b32 s{d+1}, s45, s47")
        a(f"s_cselect_b32 s{sTmp2}, 0, 7")
        a(f"s_cselect_b32 s{sTmp3}, 0, {UPO}")
        a(f"s_sub_u32 s{sTmp2}, s{sP}, s{sTmp2}")
        a(f"s_lshl_b32 s{sTmp4}, s{sTmp2}, 10")
        a(f"s_add_u32 s{sDl+j}, s{sTmp3}, s{sTmp4}")
        a(f"s_lshl_b32 s{sTmp2}, s{sTmp2}, 6")
        a(f"s_sub_u32 s{sTmp3}, s{sP}, 14")
        a(f"s_cmp_ge_u32 s{sP}, 14")
        a(f"s_cselect_b32 s{d}, s42, s{d}")
        a(f"s_cselect_b32 s{d+1}, s43, s{d+1}")
        a(f"s_and_b32 s{d+1}, s{d+1}, 0xffff")
        a(f"s_mov_b32 s{d+3}, 0x00020000")
        a(f"s_lshl_b32 s{sTmp4}, s{sTmp3}, 10")
        a(f"s_add_u32 s{sTmp4}, s{sTmp4}, {QO}")
        a(f"s_cmp_ge_u32 s{sP}, 14")
        a(f"s_cselect_b32 s{sDl+j}, s{sTmp4}, s{sDl+j}")
        a(f"s_cselect_b32 s{sDst+j}, {32*3072}, s98") if False else None
        a(f"s_mov_b32 s{sDst+j}, {32*3584}")
        a(f"s_cselect_b32 s{sTmp4}, 1, 0")
        a(f"s_cmp_eq_u32 s{sTmp4}, 1")
        a(f"s_cbranch_scc0 {name}_p{j}_mlp")
        a(f"s_mov_b32 s{sDst+j}, {32*3072}")
        a(f"s_mov_b32 s{d+2}, {512*3072}")
        a(f"s_and_b32 s{sTmp2}, s{sTmp3}, 1")
        a(f"s_lshl_b32 s{sTmp2}, s{sTmp2}, 4")
        a(f"v_lshrrev_b32 v{t0}, 2, v{vLane}")
        a(f"v_add_u32 v{t0}, s{sTmp2}, v{t0}")
        a(f"v_mul_u32_u24 v{vD+j}, 3072, v{t0}")
        a(f"v_and_b32 v{t0}, 3, v{vLane}")
        a(f"v_lshl_add_u32 v{vD+j}, v{t0}, 4, v{vD+j}")
        a(f"s_lshr_b32 s{sTmp2}, s{sTmp3}, 1")
        a(f"s_lshl_b32 s{sTmp2}, s{sTmp2}, 10")
        a(f"s_lshl_b32 s{sTmp4}, s{sCB}, 6")
        a(f"s_add_u32 s{sTmp2}, s{sTmp2}, s{sTmp4}")
        a(f"v_add_u32 v{vD+j}, s{sTmp2}, v{vD+j}")
        a(f"s_cmp_ge_u32 s{sP}, 20")
        a(f"s_cselect_b32 s{d+2}, 0, s{d+2}")
        a(f"s_branch {name}_p{j}_done")
        a.label(f"{name}_p{j}_mlp")
        a(f"s_mov_b32 s{d+2}, {512*3584}")
        a(f"v_add_u32 v{t0}, s{sTmp2}, v{vLane}")
        a(f"v_mul_u32_u24 v{t1}, 4682, v{t0}")
        a(f"v_lshrrev_b32 v{t1}, 16, v{t1}")
        a(f"v_mul_u32_u24 v{vD+j}, 14, v{t1}")
        a(f"v_sub_u32 v{t0}, v{t0}, v{vD+j}")
        a(f"v_mul_u32_u24 v{vD+j}, 3584, v{t1}")
        a(f"v_lshl_add_u32 v{vD+j}, v{t0}, 4, v{vD+j}")
        a(f"s_mul_i32 s{sTmp4}, s{sCB}, 224")
        a(f"v_add_u32 v{vD+j}, s{sTmp4}, v{vD+j}")
        a.label(f"{name}_p{j}_done")
        a(f"s_mov_b32 s{sDs+j}, 0")
    sDum = 75
    a(f"s_cmp_ge_u32 s{sW}, 4")
    a(f"s_cselect_b32 s{sDum}, 1, 0")

    def dma_stage(s):
        out = []
        base = slot_addr(s)
        for j in range(3):
            g = []
            if j < 2:
                g.append(f"s_add_u32 m0, s{sDl+j}, {base}")
            else:
                g.append(f"s_add_u32 s{sTmp4}, s{sDl+j}, {base}")
                g.append(f"s_cmp_eq_u32 s{sDum}, 1")
                g.append(f"s_cselect_b32 m0, {DUMMY}, s{sTmp4}")
            g.append("s_nop 0")
            g.append(f"buffer_load_dwordx4 v{vD+j}, s[{SD+4*j}:{SD+4*j+3}], s{sDs+j} offen lds")
            g.append(f"s_add_u32 s{sDs+j}, s{sDs+j}, s{sDst+j}")
            out.append(g)
        return out

    for g in dma_stage(0):
        for l in g:
            a(l)
    q.issue(("st", 0), 3)

    vOne = vW
    for r in range(4):
        a(f"v_mov_b32 v{vOne+r}, s{sOnes}")
    a(f"s_waitcnt vmcnt({q.wait('x')})")
    a("s_barrier")
    stamp()
    for f in range(32):
        a(f"ds_read_b128 v[{vX+4*f}:{vX+4*f+3}], v{vXa} offset:{(f//2)*64 + (f%2)*16}")
    S2 = vTmp
    a(f"s_cmp_eq_u32 s{sCH}, 1")
    a(f"s_cbranch_scc1 {name}_stat1")
    for chv in range(2):
        if chv == 1:
            a.label(f"{name}_stat1")
        a("s_waitcnt lgkmcnt(0)") if chv == 1 else a("s_waitcnt lgkmcnt(15)")
        for k, f in enumerate(range(16 * chv, 16 * chv + 16)):
            if chv == 0 and k > 0:
                a(f"s_waitcnt lgkmcnt({max(0, 15 - k)})") if False else None
            cc = "0" if k == 0 else f"a[{aA}:{aA+15}]"
            if chv == 0 and k == 0:
                a("s_waitcnt lgkmcnt(0)")
            a(f"v_mfma_f32_32x32x16_bf16 a[{aA}:{aA+15}], v[{vOne}:{vOne+3}], v[{vX+4*f}:{vX+4*f+3}], {cc}")
            for r in range(4 * f, 4 * f + 4):
                kk = r % 4
                c2 = "0" if k == 0 else f"v{S2+kk}"
                a(f"v_dot2_f32_bf16 v{S2+kk}, v{vX+r}, v{vX+r}, {c2}")
        if chv == 0:
            a(f"s_branch {name}_stat_done")
    a.label(f"{name}_stat_done")
    a(f"s_lshl_b32 s{sTmp}, s{sRG}, 9")
    a(f"s_lshl_b32 s{sTmp2}, s{sCH}, 8")
    a(f"s_add_u32 s{sTmp3}, s{sTmp}, s{sTmp2}")
    a(f"s_xor_b32 s{sTmp2}, s{sTmp2}, 256")
    a(f"s_add_u32 s{sTmp}, s{sTmp}, s{sTmp2}")
    a(f"v_and_b32 v{vS}, 31, v{vLane}")
    a(f"v_lshlrev_b32 v{vS}, 3, v{vS}")
    a(f"v_add_u32 v{vS}, {EXCH}, v{vS}")
    a(f"v_add_u32 v{vS+1}, s{sTmp}, v{vS}")
    a(f"v_add_u32 v{vS}, s{sTmp3}, v{vS}")
    a(f"""
    s_nop 3
    v_add_f32 v{S2}, v{S2}, v{S2+1}
    v_add_f32 v{S2+2}, v{S2+2}, v{S2+3}
    s_nop 0
    v_add_f32 v{S2}, v{S2}, v{S2+2}
    s_nop 0
    v_mov_b32 v{S2+1}, v{S2}
    s_nop 1
    v_permlane32_swap_b32 v{S2}, v{S2+1}
    s_nop 1
    v_add_f32 v{S2+1}, v{S2}, v{S2+1}
    v_accvgpr_read_b32 v{S2}, a{aA}
    s_nop 0
    ds_write_b64 v{vS}, v[{S2}:{S2+1}]
    s_waitcnt lgkmcnt(0)
    s_barrier
    ds_read_b64 v[{S2+2}:{S2+3}], v{vS+1}
    """)
    for st in (1, 2):
        for g in dma_stage(st):
            for l in g:
                a(l)
        q.issue(("st", st), 3)
    S1 = S2 + 4
    a(f"""
    s_waitcnt lgkmcnt(0)
    v_add_f32 v{S1}, v{S2}, v{S2+2}
    v_add_f32 v{S2}, v{S2+1}, v{S2+3}
    v_mul_f32 v{S1}, {hex(f2u(1/512))}, v{S1}
    v_mul_f32 v{S2}, {hex(f2u(1/512))}, v{S2}
    v_fma_f32 v{S2}, -v{S1}, v{S1}, v{S2}
    v_max_f32 v{S2}, 0, v{S2}
    v_cvt_pk_bf16_f32 v{S1+2}, v{S1}, v{S2}
    v_lshlrev_b32 v{S1}, 16, v{S1+2}
    v_and_b32 v{S2}, s{sMask}, v{S1+2}
    v_add_f32 v{S2}, {hex(f2u(1e-5))}, v{S2}
    v_cvt_pk_bf16_f32 v{S2}, v{S2}, v{S2}
    v_and_b32 v{S2}, s{sMask}, v{S2}
    v_sqrt_f32 v{S2}, v{S2}
    s_nop 0
    v_cvt_pk_bf16_f32 v{S2}, v{S2}, v{S2}
    v_and_b32 v{S2}, s{sMask}, v{S2}
    v_rcp_f32 v{vR}, v{S2}
    s_nop 0
    v_mul_f32 v{vC}, -v{S1}, v{vR}
    """)

    def norm_frag(f):
        out = []
        for r in range(4):
            x = vX + 4 * f + r
            tt = vTmp + 2 * r
            out.append(f"v_lshlrev_b32 v{tt}, 16, v{x}")
            out.append(f"v_and_b32 v{tt+1}, s{sMask}, v{x}")
        for r in range(4):
            tt = vTmp + 2 * r
            out.append(f"v_fma_f32 v{tt}, v{tt}, v{vR}, v{vC}")
            out.append(f"v_fma_f32 v{tt+1}, v{tt+1}, v{vR}, v{vC}")
        for r in range(4):
            x = vX + 4 * f + r
            tt = vTmp + 2 * r
            out.append(f"v_cvt_pk_bf16_f32 v{x}, v{tt}, v{tt+1}")
        return out

    for l in norm_frag(0):
        a(l)
    a(f"s_mul_i32 s{sHoff}, s{sRT}, 112")
    a(f"s_mul_i32 s{sTmp}, s{sCB}, 7")
    a(f"s_add_u32 s{sHoff}, s{sHoff}, s{sTmp}")
    a(f"s_lshl_b32 s{sHoff}, s{sHoff}, 10")
    a(f"s_add_u32 s{sHoff}, s{sHoff}, {WS_H}")
    a(f"s_add_u32 s{sHoff2}, s{sHoff}, 4096")
    a(f"v_lshrrev_b32 v{vT0}, 2, v{vLane}")
    a(f"v_lshlrev_b32 v{vT0}, 10, v{vT0}")
    a(f"v_and_b32 v{vT1}, 3, v{vLane}")
    a(f"v_lshl_add_u32 v{vT0}, v{vT1}, 4, v{vT0}")
    a(f"v_lshlrev_b32 v{vT1}, 3, v{vT1}")
    a(f"v_bfe_u32 v{vS}, v{vLane}, 2, 2")
    a(f"v_lshl_add_u32 v{vT1}, v{vS}, 6, v{vT1}")
    a(f"v_bfe_u32 v{vS}, v{vLane}, 4, 1")
    a(f"v_lshl_add_u32 v{vT1}, v{vS}, 5, v{vT1}")
    a(f"v_lshrrev_b32 v{vS}, 5, v{vLane}")
    a(f"v_lshl_add_u32 v{vT1}, v{vS}, 8, v{vT1}")
    a(f"s_lshl_b32 s{sTl}, s{sW}, 10")
    a(f"s_add_u32 s{sTl}, s{sTl}, {TSCR}")
    a(f"v_add_u32 v{vT1}, s{sTl}, v{vT1}")
    a(f"s_lshl_b32 s{sTbase}, s2, 3")
    a(f"s_add_u32 s{sTbase}, s{sTbase}, s{sW}")
    a(f"s_cmp_lt_u32 s{sTbase}, 256")
    a(f"s_mov_b32 s{SWS2}, s{SWS}")
    a(f"s_mov_b32 s{SWS2+1}, s{SWS+1}")
    a(f"s_cselect_b32 s{SWS2+2}, {WS_SIZE}, 0")
    a(f"s_mov_b32 s{SWS2+3}, 0x00020000")
    a(f"s_mov_b32 s48, s48") if False else None

    def t_loads(rr):
        o = []
        o.append(f"s_add_u32 s{sTmp2}, s{sTbase}, {rr*2048}")
        o.append(f"s_lshr_b32 s{sTmp3}, s{sTmp2}, 4")
        o.append(f"s_and_b32 s{sTmp2}, s{sTmp2}, 15")
        o.append(f"s_mul_i32 s{sTb}, s{sTmp2}, 144")
        o.append(f"s_add_u32 s{sTb}, s{sTb}, s{sTmp3}")
        o.append(f"s_lshl_b32 s{sTb}, s{sTb}, 10")
        o.append(f"s_add_u32 s{sTb}, s{sTb}, {WS_WF}")
        o.append(f"s_mov_b32 s{ST+2}, {512*1024}")
        o.append(f"s_cmp_lt_u32 s{sTmp3}, 112")
        o.append(f"s_cselect_b32 s{ST}, s50, s48")
        o.append(f"s_cselect_b32 s{ST+1}, s51, s49")
        o.append(f"s_cselect_b32 s{ST+2}, {1792*1024}, s{ST+2}")
        o.append(f"s_cselect_b32 s{sTmp}, 0, 112")
        o.append(f"s_and_b32 s{ST+1}, s{ST+1}, 0xffff")
        o.append(f"s_mov_b32 s{ST+3}, 0x00020000")
        o.append(f"s_sub_u32 s{sTmp3}, s{sTmp3}, s{sTmp}")
        o.append(f"s_lshl_b32 s{sTmp3}, s{sTmp3}, 14")
        o.append(f"s_mov_b32 m0, s{sTl}")
        o.append(f"s_lshl_b32 s{sTmp2}, s{sTmp2}, 6")
        o.append(f"s_add_u32 s{sTmp3}, s{sTmp3}, s{sTmp2}")
        o.append(f"buffer_load_dwordx4 v{vT0}, s[{ST}:{ST+3}], s{sTmp3} offen lds")
        return o

    def t_store(rr):
        sd = SWS2 if rr == 1 else SWS
        o = []
        o.append(f"ds_read_b64_tr_b16 v[{vS}:{vS+1}], v{vT1}")
        o.append(f"ds_read_b64_tr_b16 v[{vS+2}:{vS+3}], v{vT1} offset:512")
        o.append("s_waitcnt lgkmcnt(0)")
        o.append(f"buffer_store_dwordx4 v[{vS}:{vS+3}], v{vL16}, s[{sd}:{sd+3}], s{sTb} offen")
        return o

    def tile_kind(ch, t):
        if ch == 0:
            return ("q", "k", "v", "m0", "m1")[t]
        return f"m{2+t}"

    def reads(ch, n):
        out = []
        i = n % 2
        for t in range(5):
            kd = tile_kind(ch, t)
            pr = []
            for qq in range(2):
                dst = f"v[{vW+4*t+2*qq}:{vW+4*t+2*qq+1}]"
                if kd[0] == "m":
                    mt = int(kd[1])
                    off = (8 * i + 4 * qq) * 224 + mt * 32
                    pr.append(f"ds_read_b64_tr_b16 {dst}, v{vCM} offset:{off}")
                else:
                    seg = "qkv".index(kd)
                    off = seg * 2048 + (8 * i + 4 * qq) * 64
                    pr.append(f"ds_read_b64_tr_b16 {dst}, v{vCQ} offset:{off}")
            out.append(pr)
        return out

    def set_slot(s):
        return [f"v_add_u32 v{vCM}, {slot_addr(s)}, v{vRM}", f"v_add_u32 v{vCQ}, {slot_addr(s)}, v{vRQ}"]

    a(f"s_cmp_eq_u32 s{sCH}, 1")
    a(f"s_cbranch_scc1 {name}_main1")
    q_save = (q.n, dict(q.tags))
    for ch in range(2):
        q.n, q.tags = q_save[0], dict(q_save[1])
        if ch == 1:
            a.label(f"{name}_main1")
        a(f"s_waitcnt vmcnt({q.wait(('st', 0))})")
        a("s_barrier")
        stamp() if ch == 0 else None
        for l in set_slot(0):
            a(l)
        for pr in reads(ch, 0):
            for l in pr:
                a(l)
        for n in range(32):
            g, i = n // 2, n % 2
            pre, dmas = [], []
            if i == 1 and g + 1 < 16:
                pre.append(f"s_waitcnt vmcnt({q.wait(('st', g+1))})")
                pre.append("s_barrier")
                pre += set_slot(g + 1)
                if g >= 1 and g + 6 < 16:
                    dmas.append(g + 6)
            if n < 4:
                dmas.insert(0, 3 + n)
            if stamps and ch == 0 and n in (8, 16, 24):
                stamp()
            for l in pre:
                a(l)
            if n in (8, 16):
                for l in t_loads((n - 8) // 8):
                    a(l)
                q.issue("T")
            if n in (13, 21):
                a(f"s_waitcnt vmcnt({q.wait('T')})")
                for l in t_store((n - 13) // 8):
                    a(l)
                q.issue()
            fill = norm_frag(n + 1) if n + 1 < 32 else []
            nxt = reads(ch, n + 1) if n + 1 < 32 else None
            dgs = []
            for st in dmas:
                for gr in dma_stage(st):
                    dgs.append((st, gr))
            fi = 0
            for t in range(5):
                issued_next = t if nxt is not None else 0
                cnt = 2 * (4 - t) + 2 * issued_next
                a(f"s_waitcnt lgkmcnt({cnt})")
                X = f"v[{vX+4*n}:{vX+4*n+3}]"
                Wf = f"v[{vW+4*t}:{vW+4*t+3}]"
                acc = f"a[{aA+16*t}:{aA+16*t+15}]"
                cc = "0" if n == 0 else acc
                if tile_kind(ch, t) == "v":
                    a(f"v_mfma_f32_32x32x16_bf16 {acc}, {X}, {Wf}, {cc}")
                else:
                    a(f"v_mfma_f32_32x32x16_bf16 {acc}, {Wf}, {X}, {cc}")
                if nxt is not None:
                    for l in nxt[t]:
                        a(l)
                per = (len(dgs) + (5 - t) - 1) // (5 - t)
                for _ in range(per):
                    if dgs:
                        st, gr = dgs.pop(0)
                        for l in gr:
                            a(l)
                        q.issue(("st", st))
                tgt = min(len(fill), (len(fill) * (t + 1) + 3) // 4)
                while fi < tgt:
                    a(fill[fi]); fi += 1
        stamp() if ch == 0 else None
        E = vX
        kK1, kK2 = vTmp, vTmp + 1
        a(f"v_mov_b32 v{kK1}, {hex(f2u(-2*0.7978845608028654*1.4426950408889634))}")
        a(f"v_mov_b32 v{kK2}, {hex(f2u(-2*0.7978845608028654*1.4426950408889634*0.044715))}")
        a("s_nop 7")
        a("s_nop 3")

        def mlp_epi(t, mt, eb):
            G, U, X = eb, eb + 8, eb + 16
            rs = range(8)
            for r in rs:
                a(f"v_accvgpr_read_b32 v{G+r}, a{aA+16*t+r}")
            for r in rs:
                a(f"v_accvgpr_read_b32 v{U+r}, a{aA+16*t+8+r}")
            for r in rs:
                a(f"v_mul_f32 v{X+r}, v{G+r}, v{G+r}")
            for r in rs:
                a(f"v_fma_f32 v{X+r}, v{X+r}, v{kK2}, v{kK1}")
            for r in rs:
                a(f"v_mul_f32 v{X+r}, v{G+r}, v{X+r}")
            for r in rs:
                a(f"v_exp_f32 v{X+r}, v{X+r}")
            for r in rs:
                a(f"v_mul_f32 v{U+r}, v{G+r}, v{U+r}")
            for r in rs:
                a(f"v_add_f32 v{X+r}, 1.0, v{X+r}")
            for r in rs:
                a(f"v_rcp_f32 v{X+r}, v{X+r}")
            a("s_nop 0")
            for r in rs:
                a(f"v_mul_f32 v{U+r}, v{U+r}, v{X+r}")
            for r in range(4):
                a(f"v_cvt_pk_bf16_f32 v{G+r}, v{U+2*r}, v{U+2*r+1}")
            so, off = (sHoff, mt * 1024) if mt < 4 else (sHoff2, (mt - 4) * 1024)
            a(f"buffer_store_dwordx4 v[{G}:{G+3}], v{vL16}, s[{SWS}:{SWS+3}], s{so} offen offset:{off}")

        if ch == 0:
            mlp_epi(3, 0, E)
            mlp_epi(4, 1, E + 24)
            sQoff, sVoff = sTmp, sTmp2
            a(f"s_lshl_b32 s{sQoff}, s{sCB}, 7")
            a(f"s_add_u32 s{sQoff}, s{sQoff}, s{sRT}")
            a(f"s_lshl_b32 s{sQoff}, s{sQoff}, 10")
            a(f"s_add_u32 s{sVoff}, s{sQoff}, {WS_V}")
            a(f"s_add_u32 s{sTmp3}, s{sQoff}, 65536")
            a(f"s_add_u32 s{sTmp4}, s{sQoff}, {WS_K}")
            a(f"s_add_u32 s{sTb}, s{sQoff}, {WS_K+65536}")
            a(f"s_mov_b32 s{sTl}, {hex(f2u(QSCALE))}")
            for t in range(3):
                for half in range(2):
                    T = E + 48 + 12 * (2 * t + half)
                    for r in range(8):
                        a(f"v_accvgpr_read_b32 v{T+r}, a{aA+16*t+8*half+r}")
                    if t == 0:
                        for r in range(8):
                            a(f"v_mul_f32 v{T+r}, s{sTl}, v{T+r}")
                    P = T + 8
                    for r in range(4):
                        a(f"v_cvt_pk_bf16_f32 v{P+r}, v{T+2*r}, v{T+2*r+1}")
                    if t == 0:
                        so = sQoff if half == 0 else sTmp3
                        a(f"buffer_store_dwordx4 v[{P}:{P+3}], v{vL16}, s[{SWS}:{SWS+3}], s{so} offen")
                    elif t == 1:
                        so = sTmp4 if half == 0 else sTb
                        a(f"buffer_store_dwordx4 v[{P}:{P+3}], v{vL16}, s[{SWS}:{SWS+3}], s{so} offen")
                    else:
                        a(f"buffer_store_dwordx4 v[{P}:{P+3}], v{vVoff}, s[{SWS}:{SWS+3}], s{sVoff} offen offset:{half*512}")
        else:
            for t in range(5):
                mlp_epi(t, 2 + t, E + 24 * t)
        if stamps:
            if ch == 0:
                stamp()
                wg_end(a, SWS, 0, 4, 94)
                a("s_load_dwordx2 s[40:41], s[0:1], 64")
                a("s_waitcnt lgkmcnt(0)")
                a("s_mov_b32 s42, 256")
                a("s_mov_b32 s43, 0x00020000")
                a("s_cmp_lg_u32 s2, 0")
                a(f"s_cbranch_scc1 {name}_end")
                a("s_cmp_lg_u32 s3, 0")
                a(f"s_cbranch_scc1 {name}_end")
                a("v_mov_b32 v1, 0")
                for i_ in range(st_n[0]):
                    a(f"v_mov_b32 v2, s{76+2*i_}")
                    a(f"buffer_store_dword v2, v1, s[40:43], 0 offen offset:{4*i_}")
            else:
                wg_end(a, SWS, 0, 4, 94)
        if ch == 0:
            a("s_endpgm")
    a.label(f"{name}_end")
    a("s_endpgm")
    a.finish(name)
    desc = f"""
.amdhsa_kernel {name}
  .amdhsa_next_free_vgpr 256
  .amdhsa_next_free_sgpr 102
  .amdhsa_accum_offset 176
  .amdhsa_group_segment_fixed_size 0
  .amdhsa_kernarg_size 80
  .amdhsa_user_sgpr_count 2
  .amdhsa_user_sgpr_kernarg_segment_ptr 1
  .amdhsa_system_sgpr_workgroup_id_x 1
.end_amdhsa_kernel
"""
    return desc, K1B_LDS
```

```python
from asmlib import *
from k1 import WS_Q, WS_K, WS_V, WS_O, WS_G, WS_WF, WS_H, WS_SIZE, f2u

K2_LDS = 131072
OFFSET = 40.0
T0 = 8


import os
def gen_k2(a, name, stamps=False):
    NOGEMM = bool(os.environ.get('NOGEMM'))
    sW, sHead, sQB = 3, 4, 5
    SWS = 8
    sTmp, sTmp2, sTmp3 = 12, 13, 14
    sMaskV = 16
    sLoop = 18
    sOoff = 19
    sA, sB = 20, 21
    vLane, vL16, vKa, vVa = 1, 2, 3, 4
    vT = 5
    vQ = 12
    vK = 16
    vV = 24
    vP = 40
    vS = 48
    vC = 80
    vO = 96
    gA = 12
    gB = 44
    gAcc = 80
    gT = 96

    a.raw(f".p2align 8\n.globl {name}\n.type {name},@function\n{name}:")
    a("s_cmp_ge_u32 s2, 256")
    a(f"s_cbranch_scc1 {name}_end")
    if stamps:
        wg_begin(a, 40)
    a("""
    s_load_dwordx2 s[6:7], s[0:1], 72
    v_lshrrev_b32 v2, 6, v0
    v_and_b32 v1, 63, v0
    s_nop 0
    v_readfirstlane_b32 s3, v2
    s_and_b32 s4, s2, 31
    s_lshr_b32 s5, s2, 5
    """)
    a(f"v_lshlrev_b32 v{vL16}, 4, v{vLane}")
    a("s_waitcnt lgkmcnt(0)")
    a(f"s_mov_b32 s{SWS}, s6")
    a(f"s_and_b32 s{SWS+1}, s7, 0xffff")
    a(f"s_mov_b32 s{SWS+2}, {WS_SIZE}")
    a(f"s_mov_b32 s{SWS+3}, 0x00020000")
    if os.environ.get("DUP16"):
        a(f"s_and_b32 s{sW}, s{sW}, 7")
    a(f"s_cmp_ge_u32 s{sW}, 8")
    a(f"s_cbranch_scc1 {name}_gemm")

    a(f"s_lshl_b32 s{sTmp}, s{sHead}, 16")
    a(f"s_lshl_b32 s{sTmp2}, s{sW}, 10")
    a(f"s_add_u32 s{sTmp}, s{sTmp}, s{sTmp2}")
    a(f"s_add_u32 s{sTmp3}, s{sTmp}, {WS_K}")
    a(f"s_mov_b32 m0, s{sTmp2}")
    a("s_nop 0")
    a(f"buffer_load_dwordx4 v{vL16}, s[{SWS}:{SWS+3}], s{sTmp3} offen lds")
    a(f"s_add_u32 s{sTmp3}, s{sTmp}, {WS_V}")
    a(f"s_add_u32 m0, s{sTmp2}, 65536")
    a("s_nop 0")
    a(f"buffer_load_dwordx4 v{vL16}, s[{SWS}:{SWS+3}], s{sTmp3} offen lds")
    a(f"s_lshl_b32 s{sOoff}, s{sQB}, 3")
    a(f"s_add_u32 s{sOoff}, s{sOoff}, s{sW}")
    a(f"s_lshl_b32 s{sTmp3}, s{sHead}, 6")
    a(f"s_add_u32 s{sTmp3}, s{sTmp3}, s{sOoff}")
    a(f"s_lshl_b32 s{sTmp3}, s{sTmp3}, 10")
    a(f"buffer_load_dwordx4 v[{vQ}:{vQ+3}], v{vL16}, s[{SWS}:{SWS+3}], s{sTmp3} offen")
    sRest = 24
    a(f"s_mov_b32 s{sRest}, s{sTmp}")
    a(f"s_mov_b32 s{sRest+2}, s{sTmp2}")
    def rest_dma(i):
        a(f"s_add_u32 s{sTmp3}, s{sRest}, {WS_K + i*8192}")
        a(f"s_add_u32 m0, s{sRest+2}, {i*8192}")
        a("s_nop 0")
        a(f"buffer_load_dwordx4 v{vL16}, s[{SWS}:{SWS+3}], s{sTmp3} offen lds")
        a(f"s_add_u32 s{sTmp3}, s{sRest}, {WS_V + i*8192}")
        a(f"s_add_u32 m0, s{sRest+2}, {65536 + i*8192}")
        a("s_nop 0")
        a(f"buffer_load_dwordx4 v{vL16}, s[{SWS}:{SWS+3}], s{sTmp3} offen lds")
    a(f"s_lshl_b32 s{sOoff}, s{sOoff}, 5")
    a(f"s_add_u32 s{sOoff}, s{sOoff}, s{sHead}")
    a(f"s_lshl_b32 s{sOoff}, s{sOoff}, 10")
    a(f"s_add_u32 s{sOoff}, s{sOoff}, {WS_O}")
    a(f"s_mov_b32 s{sMaskV}, 0x0000ffff")
    a(f"s_mov_b32 s{sMaskV+1}, 0x0000ffff")
    a(f"v_mov_b32 v{vKa}, v{vL16}")
    a(f"v_lshrrev_b32 v{vT}, 5, v{vLane}")
    a(f"v_and_b32 v{vT+1}, 15, v{vLane}")
    a(f"v_lshlrev_b32 v{vVa}, 8, v{vT}")
    a(f"v_lshl_add_u32 v{vVa}, v{vT+1}, 4, v{vVa}")
    a(f"v_add_u32 v{vVa}, 65536, v{vVa}")
    a(f"v_and_b32 v{vT}, 31, v{vLane}")
    a(f"v_and_b32 v{vT+1}, 27, v{vT}")
    a(f"v_mov_b32 v{vT+2}, 0x3f803f80")
    a(f"v_cmp_eq_u32 vcc, 16, v{vT+1}")
    a("s_nop 1")
    a(f"v_cndmask_b32 v{vT}, 0, v{vT+2}, vcc")
    for r in range(16):
        a(f"v_mov_b32 v{vV+r}, v{vT}")
    for r in range(16):
        a(f"v_mov_b32 v{vO+r}, 0")
    a("s_waitcnt vmcnt(0)")
    a("s_barrier")
    if stamps:
        a("s_memtime s[50:51]")

    mx = vT
    for t in range(T0):
        a(f"ds_read_b128 v[{vK+4*(t%2)}:{vK+4*(t%2)+3}], v{vKa} offset:{t*1024}")
        if t < 7:
            rest_dma(t + 1)
        a("s_waitcnt lgkmcnt(0)")
        S = vS + 16 * (t % 2)
        a(f"v_mfma_f32_32x32x16_bf16 v[{S}:{S+15}], v[{vK+4*(t%2)}:{vK+4*(t%2)+3}], v[{vQ}:{vQ+3}], 0")
        if t >= 1:
            Sp = vS + 16 * ((t - 1) % 2)
            a("s_nop 8")
            for r in range(0, 16, 2):
                c = f"v{Sp+r}" if (t == 1 and r == 0) else f"v{mx}"
                a(f"v_max3_f32 v{mx}, v{Sp+r}, v{Sp+r+1}, {c}")
    Sp = vS + 16 * ((T0 - 1) % 2)
    a("s_nop 7")
    a("s_nop 3")
    for r in range(0, 16, 2):
        a(f"v_max3_f32 v{mx}, v{Sp+r}, v{Sp+r+1}, v{mx}")
    a(f"""
    s_nop 0
    v_mov_b32 v{mx+1}, v{mx}
    s_nop 1
    v_permlane32_swap_b32 v{mx}, v{mx+1}
    s_nop 1
    v_max_f32 v{mx}, v{mx}, v{mx+1}
    v_add_f32 v{mx}, {hex(f2u(OFFSET))}, v{mx}
    v_sub_f32 v{mx}, 0, v{mx}
    """)
    a(f"ds_read_b128 v[{vK}:{vK+3}], v{vKa} offset:0")
    a(f"ds_read_b128 v[{vK+4}:{vK+7}], v{vKa} offset:1024")
    a(f"s_mov_b64 exec, s[{sMaskV}:{sMaskV+1}]")
    a(f"ds_read_b128 v[{vV}:{vV+3}], v{vVa} offset:0")
    a(f"ds_read_b128 v[{vV+4}:{vV+7}], v{vVa} offset:512")
    a("s_mov_b64 exec, -1")
    for r in range(16):
        a(f"v_mov_b32 v{vC+r}, v{mx}")
    a("s_nop 0")
    a("s_waitcnt lgkmcnt(0)")
    a(f"v_mfma_f32_32x32x16_bf16 v[{vS}:{vS+15}], v[{vK}:{vK+3}], v[{vQ}:{vQ+3}], v[{vC}:{vC+15}]")
    a("s_nop 7")
    a("s_nop 3")

    XF = os.environ.get("XF", "")
    a_real = a
    def tile(j, barrier=False):
        def a(l):
            if "P" in XF and l.startswith("v_mfma") and f"v[{vO}:" in l.split(",")[0]:
                return
            if "S" in XF and l.startswith("v_mfma") and f"v[{vO}:" not in l.split(",")[0]:
                return
            if "L" in XF and (l.startswith("ds_read") or "exec" in l):
                return
            if "E" in XF and l.startswith("v_exp"):
                return
            if "C" in XF and l.startswith("v_cvt"):
                return
            a_real(l)
        cur, nxt = j % 2, 1 - j % 2
        S = vS + 16 * cur
        Sn = vS + 16 * nxt
        if barrier:
            a("s_waitcnt vmcnt(0)")
            a("s_barrier")
        a("s_waitcnt lgkmcnt(0)")
        a(f"v_mfma_f32_32x32x16_bf16 v[{Sn}:{Sn+15}], v[{vK+4*nxt}:{vK+4*nxt+3}], v[{vQ}:{vQ+3}], v[{vC}:{vC+15}]")
        a(f"ds_read_b128 v[{vK+4*cur}:{vK+4*cur+3}], v{vKa} offset:{(j+2)*1024}")
        a(f"s_mov_b64 exec, s[{sMaskV}:{sMaskV+1}]")
        a(f"ds_read_b128 v[{vV+8*nxt}:{vV+8*nxt+3}], v{vVa} offset:{(j+1)*1024}")
        a(f"ds_read_b128 v[{vV+8*nxt+4}:{vV+8*nxt+7}], v{vVa} offset:{(j+1)*1024+512}")
        a("s_mov_b64 exec, -1")
        for r in range(8):
            a(f"v_exp_f32 v{S+r}, v{S+r}")
        for r in range(4):
            a(f"v_cvt_pk_bf16_f32 v{vP+r}, v{S+2*r}, v{S+2*r+1}")
        for r in range(8, 10):
            a(f"v_exp_f32 v{S+r}, v{S+r}")
        a(f"v_mfma_f32_32x32x16_bf16 v[{vO}:{vO+15}], v[{vV+8*cur}:{vV+8*cur+3}], v[{vP}:{vP+3}], v[{vO}:{vO+15}]")
        for r in range(10, 16):
            a(f"v_exp_f32 v{S+r}, v{S+r}")
        for r in range(4, 8):
            a(f"v_cvt_pk_bf16_f32 v{vP+r}, v{S+2*r}, v{S+2*r+1}")
        a("s_nop 1")
        a(f"v_mfma_f32_32x32x16_bf16 v[{vO}:{vO+15}], v[{vV+8*cur+4}:{vV+8*cur+7}], v[{vP+4}:{vP+7}], v[{vO}:{vO+15}]")

    for j in range(8):
        tile(j, barrier=(j == 5))
    a(f"v_add_u32 v{vKa}, 8192, v{vKa}")
    a(f"v_add_u32 v{vVa}, 8192, v{vVa}")
    if stamps:
        a("s_memtime s[52:53]")
    a(f"s_mov_b32 s{sLoop}, 7")
    a.label(f"{name}_aloop")
    m = a.mark()
    for j in range(8):
        tile(j)
    a(f"v_add_u32 v{vKa}, 8192, v{vKa}")
    a(f"v_add_u32 v{vVa}, 8192, v{vVa}")
    a(f"s_sub_u32 s{sLoop}, s{sLoop}, 1")
    a(f"s_cmp_lg_u32 s{sLoop}, 0")
    a(f"s_cbranch_scc1 {name}_aloop")
    a.check_loop(m, name + "_aloop")
    if stamps:
        a("s_memtime s[54:55]")
        a("s_waitcnt lgkmcnt(0)")
        a("s_load_dwordx2 s[56:57], s[0:1], 64")
        a("s_waitcnt lgkmcnt(0)")
        a("s_mov_b32 s58, 256")
        a("s_mov_b32 s59, 0x00020000")
        a("s_lshl_b32 s60, s3, 4")
        a(f"v_mov_b32 v{vT+1}, s40")
        a(f"v_mov_b32 v{vT+2}, s50")
        a(f"v_mov_b32 v{vT+3}, s52")
        a(f"v_mov_b32 v{vT+4}, s54")
        a(f"v_mov_b32 v{vT+5}, 0")
        a("s_cmp_lg_u32 s2, 0")
        a(f"s_cbranch_scc1 {name}_nost")
        a(f"buffer_store_dwordx4 v[{vT+1}:{vT+4}], v{vT+5}, s[56:59], s60 offen")
        a.label(f"{name}_nost")
    a("s_nop 7")
    a("s_nop 7")
    a(f"v_mov_b32 v{vT}, {hex(f2u(2.0**100))}")
    a(f"v_cmp_lt_f32 vcc, v{vO+8}, v{vT}")
    a("s_nop 1")
    a("s_cmp_eq_u64 vcc, -1")
    a(f"s_cbranch_scc0 {name}_slow")
    a.label(f"{name}_fin")
    a(f"v_rcp_f32 v{vT}, v{vO+8}")
    a("s_nop 0")
    for r in range(8):
        a(f"v_mul_f32 v{vO+r}, v{vO+r}, v{vT}")
    for r in range(4):
        a(f"v_cvt_pk_bf16_f32 v{vP+r}, v{vO+2*r}, v{vO+2*r+1}")
    a(f"buffer_store_dwordx4 v[{vP}:{vP+3}], v{vL16}, s[{SWS}:{SWS+3}], s{sOoff} offen")
    if stamps:
        wg_end(a, SWS, 1, 4, 40)
    a("s_endpgm")

    a.label(f"{name}_slow")
    mrun, mnew, al = vT, vT + 1, vT + 2
    a(f"v_mov_b32 v{vKa}, v{vL16}")
    a(f"v_add_u32 v{vVa}, {-65536 & 0xffffffff}, v{vVa}")
    a(f"v_mov_b32 v{mrun}, {hex(f2u(-3.0e38))}")
    for r in range(16):
        a(f"v_mov_b32 v{vO+r}, 0")
    a(f"s_mov_b32 s{sLoop}, 64")
    a.label(f"{name}_sloop")
    m = a.mark()
    S = vS
    a(f"ds_read_b128 v[{vK}:{vK+3}], v{vKa}")
    a(f"s_mov_b64 exec, s[{sMaskV}:{sMaskV+1}]")
    a(f"ds_read_b128 v[{vV}:{vV+3}], v{vVa}")
    a(f"ds_read_b128 v[{vV+4}:{vV+7}], v{vVa} offset:512")
    a("s_mov_b64 exec, -1")
    a("s_waitcnt lgkmcnt(0)")
    a(f"v_mfma_f32_32x32x16_bf16 v[{S}:{S+15}], v[{vK}:{vK+3}], v[{vQ}:{vQ+3}], 0")
    a("s_nop 7")
    a("s_nop 7")
    a(f"v_mov_b32 v{mnew}, v{mrun}")
    for r in range(0, 16, 2):
        a(f"v_max3_f32 v{mnew}, v{S+r}, v{S+r+1}, v{mnew}")
    a(f"""
    s_nop 0
    v_mov_b32 v{al}, v{mnew}
    s_nop 1
    v_permlane32_swap_b32 v{mnew}, v{al}
    s_nop 1
    v_max_f32 v{mnew}, v{mnew}, v{al}
    v_sub_f32 v{al}, v{mrun}, v{mnew}
    v_exp_f32 v{al}, v{al}
    v_mov_b32 v{mrun}, v{mnew}
    """)
    for r in range(16):
        a(f"v_sub_f32 v{S+r}, v{S+r}, v{mnew}")
    for r in range(16):
        a(f"v_exp_f32 v{S+r}, v{S+r}")
    for r in range(16):
        a(f"v_mul_f32 v{vO+r}, v{vO+r}, v{al}")
    for r in range(8):
        a(f"v_cvt_pk_bf16_f32 v{vP+r}, v{S+2*r}, v{S+2*r+1}")
    a("s_nop 1")
    a(f"v_mfma_f32_32x32x16_bf16 v[{vO}:{vO+15}], v[{vV}:{vV+3}], v[{vP}:{vP+3}], v[{vO}:{vO+15}]")
    a(f"v_mfma_f32_32x32x16_bf16 v[{vO}:{vO+15}], v[{vV+4}:{vV+7}], v[{vP+4}:{vP+7}], v[{vO}:{vO+15}]")
    a(f"v_add_u32 v{vKa}, 1024, v{vKa}")
    a(f"v_add_u32 v{vVa}, 1024, v{vVa}")
    a("s_nop 7")
    a("s_nop 7")
    a(f"s_sub_u32 s{sLoop}, s{sLoop}, 1")
    a(f"s_cmp_lg_u32 s{sLoop}, 0")
    a(f"s_cbranch_scc1 {name}_sloop")
    a.check_loop(m, name + "_sloop")
    a(f"s_branch {name}_fin")

    a.label(f"{name}_gemm")
    if NOGEMM:
        a("s_barrier")
        a("s_barrier")
        a("s_endpgm")
    a(f"s_mov_b32 s25, s{sW}")
    a(f"s_sub_u32 s{sW}, s{sW}, 8")
    a(f"s_and_b32 s{sTmp}, s2, 7")
    a(f"s_lshl_b32 s{sTmp}, s{sTmp}, 2")
    a(f"s_bfe_u32 s{sTmp2}, s2, 0x20003")
    a(f"s_add_u32 s{sTmp}, s{sTmp}, s{sTmp2}")
    a(f"s_lshl_b32 s{sTmp}, s{sTmp}, 1")
    a(f"s_lshr_b32 s{sTmp2}, s{sW}, 1")
    a(f"s_add_u32 s{sTmp}, s{sTmp}, s{sTmp2}")
    a(f"s_lshr_b32 s{sTmp2}, s2, 5")
    a(f"s_lshl_b32 s{sTmp2}, s{sTmp2}, 1")
    a(f"s_and_b32 s{sTmp3}, s{sW}, 1")
    a(f"s_add_u32 s{sTmp2}, s{sTmp2}, s{sTmp3}")
    a(f"s_mul_i32 s{sA}, s{sTmp2}, {144*1024}")
    a(f"s_add_u32 s{sA}, s{sA}, {WS_WF}")
    a(f"s_mul_i32 s{sB}, s{sTmp}, {112*1024}")
    a(f"s_add_u32 s{sB}, s{sB}, {WS_H}")
    a(f"s_lshl_b32 s{sOoff}, s{sTmp}, 4")
    a(f"s_add_u32 s{sOoff}, s{sOoff}, s{sTmp2}")
    a(f"s_lshl_b32 s{sOoff}, s{sOoff}, 11")
    a(f"s_add_u32 s{sOoff}, s{sOoff}, {WS_G}")
    sA2, sB2 = 22, 23

    def gload(k):
        sa, sb = (sA, sB) if k < 4 else (sA2, sB2)
        a(f"buffer_load_dwordx4 v[{gA+4*k}:{gA+4*k+3}], v{vL16}, s[{SWS}:{SWS+3}], s{sa} offen offset:{(k%4)*1024}")
        a(f"buffer_load_dwordx4 v[{gB+4*k}:{gB+4*k+3}], v{vL16}, s[{SWS}:{SWS+3}], s{sb} offen offset:{(k%4)*1024}")

    def adv():
        a(f"s_add_u32 s{sA}, s{sA}, 8192")
        a(f"s_add_u32 s{sB}, s{sB}, 8192")
        a(f"s_add_u32 s{sA2}, s{sA2}, 8192")
        a(f"s_add_u32 s{sB2}, s{sB2}, 8192")

    a(f"s_add_u32 s{sA2}, s{sA}, 4096")
    a(f"s_add_u32 s{sB2}, s{sB}, 4096")
    a("s_barrier")
    for k in range(8):
        gload(k)
    adv()
    acc = f"v[{gAcc}:{gAcc+15}]"

    def gblock(first=False, last=False):
        for k in range(8):
            n = 14 - 2 * k if last else 14
            a(f"s_waitcnt vmcnt({n})")
            cc = "0" if (first and k == 0) else acc
            a(f"v_mfma_f32_32x32x16_bf16 {acc}, v[{gA+4*k}:{gA+4*k+3}], v[{gB+4*k}:{gB+4*k+3}], {cc}")
            if not last:
                gload(k)
        if not last:
            adv()

    gblock(first=True)
    a("s_barrier")
    a(f"s_mov_b32 s{sLoop}, 12")
    a.label(f"{name}_gloop")
    m = a.mark()
    gblock()
    a(f"s_sub_u32 s{sLoop}, s{sLoop}, 1")
    a(f"s_cmp_lg_u32 s{sLoop}, 0")
    a(f"s_cbranch_scc1 {name}_gloop")
    a.check_loop(m, name + "_gloop")
    gblock(last=True)
    a(f"s_mov_b32 s{sTmp}, {hex(f2u(-1.4426950408889634))}")
    a("s_nop 7")
    a("s_nop 3")
    X = gT
    for r in range(16):
        a(f"v_mul_f32 v{X+r}, s{sTmp}, v{gAcc+r}")
    for r in range(16):
        a(f"v_exp_f32 v{X+r}, v{X+r}")
    for r in range(16):
        a(f"v_add_f32 v{X+r}, 1.0, v{X+r}")
    for r in range(16):
        a(f"v_rcp_f32 v{X+r}, v{X+r}")
    for r in range(16):
        a(f"v_mul_f32 v{X+r}, v{X+r}, v{gAcc+r}")
    for r in range(8):
        a(f"v_cvt_pk_bf16_f32 v{gA+r}, v{X+2*r}, v{X+2*r+1}")
    a(f"buffer_store_dwordx4 v[{gA}:{gA+3}], v{vL16}, s[{SWS}:{SWS+3}], s{sOoff} offen")
    a(f"buffer_store_dwordx4 v[{gA+4}:{gA+7}], v{vL16}, s[{SWS}:{SWS+3}], s{sOoff} offen offset:1024")
    if stamps:
        a(f"s_mov_b32 s{sW}, s25")
        wg_end(a, SWS, 1, 100, 40)
    a.label(f"{name}_end")
    a("s_endpgm")
    a.finish(name)
    desc = f"""
.amdhsa_kernel {name}
  .amdhsa_next_free_vgpr 112
  .amdhsa_next_free_sgpr 64
  .amdhsa_accum_offset 112
  .amdhsa_group_segment_fixed_size 0
  .amdhsa_kernarg_size 80
  .amdhsa_user_sgpr_count 2
  .amdhsa_user_sgpr_kernarg_segment_ptr 1
  .amdhsa_system_sgpr_workgroup_id_x 1
.end_amdhsa_kernel
"""
    return desc, K2_LDS
```

```python
import sys, os
sys.path.insert(0, os.path.dirname(__file__))
from asmlib import *
import k1
NAME = "recurrent_scan__softmax_full_mha__glu_gated_geglu__prompt"
HDR = open("cdna_kernels/%s.s.ref" % NAME).read().split("; Override launch geometry")[0]

K2B = int(os.environ.get("K2B", "768"))
STAMPS = bool(os.environ.get("STAMPS"))
def build(which=("k1", "k2", "k3"), out=None):
    a = Asm()
    descs = []
    launches = []
    if "k1" in which:
        a.stflag = os.environ.get("ST1", "sc1")
        if os.environ.get("K1OLD"):
            d, lds = k1.gen_k1(a, "k1_kernel", stamps=STAMPS); descs.append(d)
            launches.append(f"; @launch kernel=k1_kernel grid=(256,1,1) block=(256,1,1) lds={lds}")
        else:
            import k1b
            d, lds = k1b.gen_k1b(a, "k1_kernel", stamps=STAMPS); descs.append(d)
            launches.append(f"; @launch kernel=k1_kernel grid=(256,1,1) block=(512,1,1) lds={lds}")
    if "k2" in which:
        import k2
        a.stflag = os.environ.get("ST2", "sc1")
        d, lds = k2.gen_k2(a, "k2_kernel", stamps=STAMPS); descs.append(d)
        launches.append(f"; @launch kernel=k2_kernel grid=(256,1,1) block=({K2B},1,1) lds={lds}")
    if "k3" in which:
        import k3
        a.stflag = ""
        d, lds = k3.gen_k3(a, "k3_kernel", stamps=STAMPS); descs.append(d)
        launches.append(f"; @launch kernel=k3_kernel grid=(256,1,1) block=(256,1,1) lds={lds}")
    if a.errs:
        print("HAZARDS:", len(a.errs))
        for e in a.errs[:40]:
            print(e)
    txt = HDR + "\n".join(launches) + "\n"
    txt += '.amdgcn_target "amdgcn-amd-amdhsa--gfx950"\n.text\n'
    txt += a.text()
    txt += '.section .rodata,"a"\n.p2align 6\n' + "".join(descs)
    out = out or "cdna_kernels/%s.s" % NAME
    open(out, "w").write(txt)
    return out

if __name__ == "__main__":
    which = tuple(sys.argv[1].split(",")) if len(sys.argv) > 1 else ("k1", "k2", "k3")
    out = sys.argv[2] if len(sys.argv) > 2 else None
    print(build(which, out))
```

```python
from asmlib import *
from k1 import WS_Q, WS_K, WS_V, WS_O, WS_G, WS_WF, WS_H, WS_SIZE, QSCALE, f2u, VQ

XPITCH = 1040
SLOT = 20736
UPO = 7296
QO = 14592
SLOT6 = 128 * XPITCH
DUMMY = SLOT6 + SLOT
EXCH = DUMMY + 1024
TSCR = 6 * SLOT
K1B_LDS = EXCH + 2048


def slot_addr(s):
    k = (s + 6) % 7
    return SLOT6 if k == 6 else k * SLOT


import os
def gen_k1b(a, name, stamps=False):
    sW, sRB, sCB, sRG, sCH, sRT = 3, 4, 5, 6, 7, 59
    SX, SWS, ST, SWS2 = 8, 12, 16, 20
    SD = 24
    sDl = 36
    sDs = 60
    sDst = 64
    sOnes, sMask = 67, 68
    sTmp, sTmp2, sTmp3, sTmp4 = 54, 55, 56, 57
    sHoff, sHoff2, sTb, sTbase, sTl = 70, 71, 72, 73, 74
    vLane, vL16, vXa, vVoff = 1, 2, 3, 4
    vD = 5
    vRM, vRQ = 8, 9
    vCM, vCQ = 10, 11
    vR, vC = 12, 13
    vTmp = 14
    vW = 22
    vX = 42
    vT0, vT1 = 170, 171
    vS = 172
    aA = 0

    st_n = [0]

    def stamp():
        if not stamps:
            return
        k = 76 + 2 * st_n[0]
        st_n[0] += 1
        a(f"s_memtime s[{k}:{k+1}]")
        a("s_waitcnt lgkmcnt(0)")

    q = VQ()
    a.raw(f".p2align 8\n.globl {name}\n.type {name},@function\n{name}:")
    a("s_cmp_ge_u32 s2, 256")
    a(f"s_cbranch_scc1 {name}_end")
    if stamps:
        wg_begin(a, 94)
    if os.environ.get("PF", "0") == "1":
        a("s_getpc_b64 s[98:99]")
        a.label(f"{name}_pf")
        a("v_lshlrev_b32 v3, 4, v0")
        for i in range(5):
            a(f"v_add_u32 v4, {i*8192}, v3")
            a.raw(f"    v_min_u32 v4, (k3_kernel_end - {name}_pf - 16), v4")
            a(f"global_load_dwordx4 v[{44+4*i}:{44+4*i+3}], v4, s[98:99]")
            q.issue()
    a("""
    s_load_dwordx4 s[40:43], s[0:1], 0
    s_load_dwordx4 s[44:47], s[0:1], 32
    s_load_dwordx2 s[48:49], s[0:1], 16
    s_load_dwordx2 s[50:51], s[0:1], 48
    s_load_dwordx2 s[52:53], s[0:1], 72
    v_lshrrev_b32 v2, 6, v0
    v_and_b32 v1, 63, v0
    s_nop 0
    v_readfirstlane_b32 s3, v2
    """)
    RM = os.environ.get("RMAP", "4")
    if RM == "4":
        a("""
    s_bfe_u32 s4, s2, 0x20001
    s_lshl_b32 s4, s4, 2
    s_lshr_b32 s5, s2, 6
    s_add_u32 s4, s4, s5
    s_and_b32 s5, s2, 1
    s_lshl_b32 s5, s5, 3
    s_bfe_u32 s6, s2, 0x30003
    s_add_u32 s5, s5, s6
    """)
    elif RM == "8":
        a("""
    s_bfe_u32 s4, s2, 0x10002
    s_lshl_b32 s4, s4, 3
    s_lshr_b32 s5, s2, 5
    s_add_u32 s4, s4, s5
    s_and_b32 s5, s2, 3
    s_lshl_b32 s5, s5, 2
    s_bfe_u32 s6, s2, 0x20003
    s_add_u32 s5, s5, s6
    """)
    else:
        a("""
    s_lshr_b32 s4, s2, 4
    s_and_b32 s5, s2, 15
    """)
    a("""
    s_and_b32 s6, s3, 3
    s_lshr_b32 s7, s3, 2
    """)
    a(f"s_mov_b32 s{sOnes}, 0x3f803f80")
    a(f"s_mov_b32 s{sMask}, 0xffff0000")
    a(f"s_lshl_b32 s{sRT}, s{sRB}, 2")
    a(f"s_add_u32 s{sRT}, s{sRT}, s{sRG}")
    a(f"v_lshlrev_b32 v{vL16}, 4, v{vLane}")
    t0, t1, t2, t3 = vTmp, vTmp + 1, vTmp + 2, vTmp + 3
    a(f"v_and_b32 v{t0}, 31, v{vLane}")
    a(f"v_lshrrev_b32 v{t1}, 5, v{vLane}")
    a(f"s_mul_i32 s{sTmp}, s{sRG}, {32*XPITCH}")
    a(f"v_mul_u32_u24 v{vXa}, {XPITCH}, v{t0}")
    a(f"v_lshl_add_u32 v{vXa}, v{t1}, 5, v{vXa}")
    a(f"v_add_u32 v{vXa}, s{sTmp}, v{vXa}")
    a(f"v_bfe_u32 v{t2}, v{vLane}, 4, 1")
    a(f"v_lshlrev_b32 v{vVoff}, 16, v{t2}")
    a(f"v_lshl_add_u32 v{vVoff}, v{t1}, 8, v{vVoff}")
    a(f"v_and_b32 v{t2}, 15, v{vLane}")
    a(f"v_lshl_add_u32 v{vVoff}, v{t2}, 4, v{vVoff}")
    a(f"v_bfe_u32 v{t2}, v{vLane}, 2, 2")
    a(f"v_lshl_add_u32 v{t2}, v{t1}, 4, v{t2}")
    a(f"v_and_b32 v{t3}, 3, v{vLane}")
    a(f"v_bfe_u32 v{t0}, v{vLane}, 4, 1")
    a(f"v_mul_u32_u24 v{vRM}, 224, v{t2}")
    a(f"v_lshl_add_u32 v{vRM}, v{t3}, 3, v{vRM}")
    a(f"v_mul_u32_u24 v{vRQ}, {UPO}, v{t0}")
    a(f"v_add_u32 v{vRM}, v{vRM}, v{vRQ}")
    a(f"v_lshlrev_b32 v{vRQ}, 6, v{t2}")
    a(f"v_lshl_add_u32 v{vRQ}, v{t3}, 3, v{vRQ}")
    a(f"v_lshl_add_u32 v{vRQ}, v{t0}, 5, v{vRQ}")
    a(f"v_add_u32 v{vRQ}, {QO}, v{vRQ}")
    a("s_waitcnt lgkmcnt(0)")

    def srd(d, lo, size):
        a(f"s_mov_b32 s{d}, s{lo}")
        a(f"s_and_b32 s{d+1}, s{lo+1}, 0xffff")
        a(f"s_mov_b32 s{d+2}, {size}")
        a(f"s_mov_b32 s{d+3}, 0x00020000")
    srd(SX, 40, 2048 * 1024)
    stamp()
    a(f"s_lshl_b32 s{sTmp}, s{sRB}, 17")
    a(f"s_lshl_b32 s{sTmp2}, s{sW}, 14")
    a(f"s_add_u32 s{sTmp}, s{sTmp}, s{sTmp2}")
    a(f"s_mul_i32 s{sTmp2}, s{sW}, {16*XPITCH}")
    for r in range(16):
        a(f"s_add_u32 m0, s{sTmp2}, {r*XPITCH}")
        a(f"s_add_u32 s{sTmp3}, s{sTmp}, {r*1024}")
        a(f"buffer_load_dwordx4 v{vL16}, s[{SX}:{SX+3}], s{sTmp3} offen lds")
        q.issue("x")
    srd(SWS, 52, WS_SIZE)

    for j in range(3):
        sP = sTmp
        a(f"s_add_u32 s{sP}, s{sW}, {8*j}")
        d = SD + 4 * j
        a(f"s_cmp_lt_u32 s{sP}, 7")
        a(f"s_cselect_b32 s{d}, s44, s46")
        a(f"s_cselect_b32 s{d+1}, s45, s47")
        a(f"s_cselect_b32 s{sTmp2}, 0, 7")
        a(f"s_cselect_b32 s{sTmp3}, 0, {UPO}")
        a(f"s_sub_u32 s{sTmp2}, s{sP}, s{sTmp2}")
        a(f"s_lshl_b32 s{sTmp4}, s{sTmp2}, 10")
        a(f"s_add_u32 s{sDl+j}, s{sTmp3}, s{sTmp4}")
        a(f"s_lshl_b32 s{sTmp2}, s{sTmp2}, 6")
        a(f"s_sub_u32 s{sTmp3}, s{sP}, 14")
        a(f"s_cmp_ge_u32 s{sP}, 14")
        a(f"s_cselect_b32 s{d}, s42, s{d}")
        a(f"s_cselect_b32 s{d+1}, s43, s{d+1}")
        a(f"s_and_b32 s{d+1}, s{d+1}, 0xffff")
        a(f"s_mov_b32 s{d+3}, 0x00020000")
        a(f"s_lshl_b32 s{sTmp4}, s{sTmp3}, 10")
        a(f"s_add_u32 s{sTmp4}, s{sTmp4}, {QO}")
        a(f"s_cmp_ge_u32 s{sP}, 14")
        a(f"s_cselect_b32 s{sDl+j}, s{sTmp4}, s{sDl+j}")
        a(f"s_cselect_b32 s{sDst+j}, {32*3072}, s98") if False else None
        a(f"s_mov_b32 s{sDst+j}, {32*3584}")
        a(f"s_cselect_b32 s{sTmp4}, 1, 0")
        a(f"s_cmp_eq_u32 s{sTmp4}, 1")
        a(f"s_cbranch_scc0 {name}_p{j}_mlp")
        a(f"s_mov_b32 s{sDst+j}, {32*3072}")
        a(f"s_mov_b32 s{d+2}, {512*3072}")
        a(f"s_and_b32 s{sTmp2}, s{sTmp3}, 1")
        a(f"s_lshl_b32 s{sTmp2}, s{sTmp2}, 4")
        a(f"v_lshrrev_b32 v{t0}, 2, v{vLane}")
        a(f"v_add_u32 v{t0}, s{sTmp2}, v{t0}")
        a(f"v_mul_u32_u24 v{vD+j}, 3072, v{t0}")
        a(f"v_and_b32 v{t0}, 3, v{vLane}")
        a(f"v_lshl_add_u32 v{vD+j}, v{t0}, 4, v{vD+j}")
        a(f"s_lshr_b32 s{sTmp2}, s{sTmp3}, 1")
        a(f"s_lshl_b32 s{sTmp2}, s{sTmp2}, 10")
        a(f"s_lshl_b32 s{sTmp4}, s{sCB}, 6")
        a(f"s_add_u32 s{sTmp2}, s{sTmp2}, s{sTmp4}")
        a(f"v_add_u32 v{vD+j}, s{sTmp2}, v{vD+j}")
        a(f"s_cmp_ge_u32 s{sP}, 20")
        a(f"s_cselect_b32 s{d+2}, 0, s{d+2}")
        a(f"s_branch {name}_p{j}_done")
        a.label(f"{name}_p{j}_mlp")
        a(f"s_mov_b32 s{d+2}, {512*3584}")
        a(f"v_add_u32 v{t0}, s{sTmp2}, v{vLane}")
        a(f"v_mul_u32_u24 v{t1}, 4682, v{t0}")
        a(f"v_lshrrev_b32 v{t1}, 16, v{t1}")
        a(f"v_mul_u32_u24 v{vD+j}, 14, v{t1}")
        a(f"v_sub_u32 v{t0}, v{t0}, v{vD+j}")
        a(f"v_mul_u32_u24 v{vD+j}, 3584, v{t1}")
        a(f"v_lshl_add_u32 v{vD+j}, v{t0}, 4, v{vD+j}")
        a(f"s_mul_i32 s{sTmp4}, s{sCB}, 224")
        a(f"v_add_u32 v{vD+j}, s{sTmp4}, v{vD+j}")
        a.label(f"{name}_p{j}_done")
        a(f"s_mov_b32 s{sDs+j}, 0")
    sDum = 75
    a(f"s_cmp_ge_u32 s{sW}, 4")
    a(f"s_cselect_b32 s{sDum}, 1, 0")

    def dma_stage(s):
        out = []
        base = slot_addr(s)
        for j in range(3):
            g = []
            if j < 2:
                g.append(f"s_add_u32 m0, s{sDl+j}, {base}")
            else:
                g.append(f"s_add_u32 s{sTmp4}, s{sDl+j}, {base}")
                g.append(f"s_cmp_eq_u32 s{sDum}, 1")
                g.append(f"s_cselect_b32 m0, {DUMMY}, s{sTmp4}")
            g.append("s_nop 0")
            g.append(f"buffer_load_dwordx4 v{vD+j}, s[{SD+4*j}:{SD+4*j+3}], s{sDs+j} offen lds")
            g.append(f"s_add_u32 s{sDs+j}, s{sDs+j}, s{sDst+j}")
            out.append(g)
        return out

    for g in dma_stage(0):
        for l in g:
            a(l)
    q.issue(("st", 0), 3)

    vOne = vW
    for r in range(4):
        a(f"v_mov_b32 v{vOne+r}, s{sOnes}")
    a(f"s_waitcnt vmcnt({q.wait('x')})")
    a("s_barrier")
    stamp()
    for f in range(32):
        a(f"ds_read_b128 v[{vX+4*f}:{vX+4*f+3}], v{vXa} offset:{(f//2)*64 + (f%2)*16}")
    S2 = vTmp
    a(f"s_cmp_eq_u32 s{sCH}, 1")
    a(f"s_cbranch_scc1 {name}_stat1")
    for chv in range(2):
        if chv == 1:
            a.label(f"{name}_stat1")
        a("s_waitcnt lgkmcnt(0)") if chv == 1 else a("s_waitcnt lgkmcnt(15)")
        for k, f in enumerate(range(16 * chv, 16 * chv + 16)):
            if chv == 0 and k > 0:
                a(f"s_waitcnt lgkmcnt({max(0, 15 - k)})") if False else None
            cc = "0" if k == 0 else f"a[{aA}:{aA+15}]"
            if chv == 0 and k == 0:
                a("s_waitcnt lgkmcnt(0)")
            a(f"v_mfma_f32_32x32x16_bf16 a[{aA}:{aA+15}], v[{vOne}:{vOne+3}], v[{vX+4*f}:{vX+4*f+3}], {cc}")
            for r in range(4 * f, 4 * f + 4):
                kk = r % 4
                c2 = "0" if k == 0 else f"v{S2+kk}"
                a(f"v_dot2_f32_bf16 v{S2+kk}, v{vX+r}, v{vX+r}, {c2}")
        if chv == 0:
            a(f"s_branch {name}_stat_done")
    a.label(f"{name}_stat_done")
    a(f"s_lshl_b32 s{sTmp}, s{sRG}, 9")
    a(f"s_lshl_b32 s{sTmp2}, s{sCH}, 8")
    a(f"s_add_u32 s{sTmp3}, s{sTmp}, s{sTmp2}")
    a(f"s_xor_b32 s{sTmp2}, s{sTmp2}, 256")
    a(f"s_add_u32 s{sTmp}, s{sTmp}, s{sTmp2}")
    a(f"v_and_b32 v{vS}, 31, v{vLane}")
    a(f"v_lshlrev_b32 v{vS}, 3, v{vS}")
    a(f"v_add_u32 v{vS}, {EXCH}, v{vS}")
    a(f"v_add_u32 v{vS+1}, s{sTmp}, v{vS}")
    a(f"v_add_u32 v{vS}, s{sTmp3}, v{vS}")
    a(f"""
    s_nop 3
    v_add_f32 v{S2}, v{S2}, v{S2+1}
    v_add_f32 v{S2+2}, v{S2+2}, v{S2+3}
    s_nop 0
    v_add_f32 v{S2}, v{S2}, v{S2+2}
    s_nop 0
    v_mov_b32 v{S2+1}, v{S2}
    s_nop 1
    v_permlane32_swap_b32 v{S2}, v{S2+1}
    s_nop 1
    v_add_f32 v{S2+1}, v{S2}, v{S2+1}
    v_accvgpr_read_b32 v{S2}, a{aA}
    s_nop 0
    ds_write_b64 v{vS}, v[{S2}:{S2+1}]
    s_waitcnt lgkmcnt(0)
    s_barrier
    ds_read_b64 v[{S2+2}:{S2+3}], v{vS+1}
    """)
    for st in (1, 2):
        for g in dma_stage(st):
            for l in g:
                a(l)
        q.issue(("st", st), 3)
    S1 = S2 + 4
    a(f"""
    s_waitcnt lgkmcnt(0)
    v_add_f32 v{S1}, v{S2}, v{S2+2}
    v_add_f32 v{S2}, v{S2+1}, v{S2+3}
    v_mul_f32 v{S1}, {hex(f2u(1/512))}, v{S1}
    v_mul_f32 v{S2}, {hex(f2u(1/512))}, v{S2}
    v_fma_f32 v{S2}, -v{S1}, v{S1}, v{S2}
    v_max_f32 v{S2}, 0, v{S2}
    v_cvt_pk_bf16_f32 v{S1+2}, v{S1}, v{S2}
    v_lshlrev_b32 v{S1}, 16, v{S1+2}
    v_and_b32 v{S2}, s{sMask}, v{S1+2}
    v_add_f32 v{S2}, {hex(f2u(1e-5))}, v{S2}
    v_cvt_pk_bf16_f32 v{S2}, v{S2}, v{S2}
    v_and_b32 v{S2}, s{sMask}, v{S2}
    v_sqrt_f32 v{S2}, v{S2}
    s_nop 0
    v_cvt_pk_bf16_f32 v{S2}, v{S2}, v{S2}
    v_and_b32 v{S2}, s{sMask}, v{S2}
    v_rcp_f32 v{vR}, v{S2}
    s_nop 0
    v_mul_f32 v{vC}, -v{S1}, v{vR}
    """)

    def norm_frag(f):
        out = []
        for r in range(4):
            x = vX + 4 * f + r
            tt = vTmp + 2 * r
            out.append(f"v_lshlrev_b32 v{tt}, 16, v{x}")
            out.append(f"v_and_b32 v{tt+1}, s{sMask}, v{x}")
        for r in range(4):
            tt = vTmp + 2 * r
            out.append(f"v_fma_f32 v{tt}, v{tt}, v{vR}, v{vC}")
            out.append(f"v_fma_f32 v{tt+1}, v{tt+1}, v{vR}, v{vC}")
        for r in range(4):
            x = vX + 4 * f + r
            tt = vTmp + 2 * r
            out.append(f"v_cvt_pk_bf16_f32 v{x}, v{tt}, v{tt+1}")
        return out

    for l in norm_frag(0):
        a(l)
    a(f"s_mul_i32 s{sHoff}, s{sRT}, 112")
    a(f"s_mul_i32 s{sTmp}, s{sCB}, 7")
    a(f"s_add_u32 s{sHoff}, s{sHoff}, s{sTmp}")
    a(f"s_lshl_b32 s{sHoff}, s{sHoff}, 10")
    a(f"s_add_u32 s{sHoff}, s{sHoff}, {WS_H}")
    a(f"s_add_u32 s{sHoff2}, s{sHoff}, 4096")
    a(f"v_lshrrev_b32 v{vT0}, 2, v{vLane}")
    a(f"v_lshlrev_b32 v{vT0}, 10, v{vT0}")
    a(f"v_and_b32 v{vT1}, 3, v{vLane}")
    a(f"v_lshl_add_u32 v{vT0}, v{vT1}, 4, v{vT0}")
    a(f"v_lshlrev_b32 v{vT1}, 3, v{vT1}")
    a(f"v_bfe_u32 v{vS}, v{vLane}, 2, 2")
    a(f"v_lshl_add_u32 v{vT1}, v{vS}, 6, v{vT1}")
    a(f"v_bfe_u32 v{vS}, v{vLane}, 4, 1")
    a(f"v_lshl_add_u32 v{vT1}, v{vS}, 5, v{vT1}")
    a(f"v_lshrrev_b32 v{vS}, 5, v{vLane}")
    a(f"v_lshl_add_u32 v{vT1}, v{vS}, 8, v{vT1}")
    a(f"s_lshl_b32 s{sTl}, s{sW}, 10")
    a(f"s_add_u32 s{sTl}, s{sTl}, {TSCR}")
    a(f"v_add_u32 v{vT1}, s{sTl}, v{vT1}")
    a(f"s_lshl_b32 s{sTbase}, s2, 3")
    a(f"s_add_u32 s{sTbase}, s{sTbase}, s{sW}")
    a(f"s_cmp_lt_u32 s{sTbase}, 256")
    a(f"s_mov_b32 s{SWS2}, s{SWS}")
    a(f"s_mov_b32 s{SWS2+1}, s{SWS+1}")
    a(f"s_cselect_b32 s{SWS2+2}, {WS_SIZE}, 0")
    a(f"s_mov_b32 s{SWS2+3}, 0x00020000")
    a(f"s_mov_b32 s48, s48") if False else None

    def t_loads(rr):
        o = []
        o.append(f"s_add_u32 s{sTmp2}, s{sTbase}, {rr*2048}")
        o.append(f"s_lshr_b32 s{sTmp3}, s{sTmp2}, 4")
        o.append(f"s_and_b32 s{sTmp2}, s{sTmp2}, 15")
        o.append(f"s_mul_i32 s{sTb}, s{sTmp2}, 144")
        o.append(f"s_add_u32 s{sTb}, s{sTb}, s{sTmp3}")
        o.append(f"s_lshl_b32 s{sTb}, s{sTb}, 10")
        o.append(f"s_add_u32 s{sTb}, s{sTb}, {WS_WF}")
        o.append(f"s_mov_b32 s{ST+2}, {512*1024}")
        o.append(f"s_cmp_lt_u32 s{sTmp3}, 112")
        o.append(f"s_cselect_b32 s{ST}, s50, s48")
        o.append(f"s_cselect_b32 s{ST+1}, s51, s49")
        o.append(f"s_cselect_b32 s{ST+2}, {1792*1024}, s{ST+2}")
        o.append(f"s_cselect_b32 s{sTmp}, 0, 112")
        o.append(f"s_and_b32 s{ST+1}, s{ST+1}, 0xffff")
        o.append(f"s_mov_b32 s{ST+3}, 0x00020000")
        o.append(f"s_sub_u32 s{sTmp3}, s{sTmp3}, s{sTmp}")
        o.append(f"s_lshl_b32 s{sTmp3}, s{sTmp3}, 14")
        o.append(f"s_mov_b32 m0, s{sTl}")
        o.append(f"s_lshl_b32 s{sTmp2}, s{sTmp2}, 6")
        o.append(f"s_add_u32 s{sTmp3}, s{sTmp3}, s{sTmp2}")
        o.append(f"buffer_load_dwordx4 v{vT0}, s[{ST}:{ST+3}], s{sTmp3} offen lds")
        return o

    def t_store(rr):
        sd = SWS2 if rr == 1 else SWS
        o = []
        o.append(f"ds_read_b64_tr_b16 v[{vS}:{vS+1}], v{vT1}")
        o.append(f"ds_read_b64_tr_b16 v[{vS+2}:{vS+3}], v{vT1} offset:512")
        o.append("s_waitcnt lgkmcnt(0)")
        o.append(f"buffer_store_dwordx4 v[{vS}:{vS+3}], v{vL16}, s[{sd}:{sd+3}], s{sTb} offen")
        return o

    def tile_kind(ch, t):
        if ch == 0:
            return ("q", "k", "v", "m0", "m1")[t]
        return f"m{2+t}"

    def reads(ch, n):
        out = []
        i = n % 2
        for t in range(5):
            kd = tile_kind(ch, t)
            pr = []
            for qq in range(2):
                dst = f"v[{vW+4*t+2*qq}:{vW+4*t+2*qq+1}]"
                if kd[0] == "m":
                    mt = int(kd[1])
                    off = (8 * i + 4 * qq) * 224 + mt * 32
                    pr.append(f"ds_read_b64_tr_b16 {dst}, v{vCM} offset:{off}")
                else:
                    seg = "qkv".index(kd)
                    off = seg * 2048 + (8 * i + 4 * qq) * 64
                    pr.append(f"ds_read_b64_tr_b16 {dst}, v{vCQ} offset:{off}")
            out.append(pr)
        return out

    def set_slot(s):
        return [f"v_add_u32 v{vCM}, {slot_addr(s)}, v{vRM}", f"v_add_u32 v{vCQ}, {slot_addr(s)}, v{vRQ}"]

    a(f"s_cmp_eq_u32 s{sCH}, 1")
    a(f"s_cbranch_scc1 {name}_main1")
    q_save = (q.n, dict(q.tags))
    for ch in range(2):
        q.n, q.tags = q_save[0], dict(q_save[1])
        if ch == 1:
            a.label(f"{name}_main1")
        a(f"s_waitcnt vmcnt({q.wait(('st', 0))})")
        a("s_barrier")
        stamp() if ch == 0 else None
        for l in set_slot(0):
            a(l)
        for pr in reads(ch, 0):
            for l in pr:
                a(l)
        for n in range(32):
            g, i = n // 2, n % 2
            pre, dmas = [], []
            if i == 1 and g + 1 < 16:
                pre.append(f"s_waitcnt vmcnt({q.wait(('st', g+1))})")
                pre.append("s_barrier")
                pre += set_slot(g + 1)
                if g >= 1 and g + 6 < 16:
                    dmas.append(g + 6)
            if n < 4:
                dmas.insert(0, 3 + n)
            if stamps and ch == 0 and n in (8, 16, 24):
                stamp()
            for l in pre:
                a(l)
            if n in (8, 16):
                for l in t_loads((n - 8) // 8):
                    a(l)
                q.issue("T")
            if n in (13, 21):
                a(f"s_waitcnt vmcnt({q.wait('T')})")
                for l in t_store((n - 13) // 8):
                    a(l)
                q.issue()
            fill = norm_frag(n + 1) if n + 1 < 32 else []
            nxt = reads(ch, n + 1) if n + 1 < 32 else None
            dgs = []
            for st in dmas:
                for gr in dma_stage(st):
                    dgs.append((st, gr))
            fi = 0
            for t in range(5):
                issued_next = t if nxt is not None else 0
                cnt = 2 * (4 - t) + 2 * issued_next
                a(f"s_waitcnt lgkmcnt({cnt})")
                X = f"v[{vX+4*n}:{vX+4*n+3}]"
                Wf = f"v[{vW+4*t}:{vW+4*t+3}]"
                acc = f"a[{aA+16*t}:{aA+16*t+15}]"
                cc = "0" if n == 0 else acc
                if tile_kind(ch, t) == "v":
                    a(f"v_mfma_f32_32x32x16_bf16 {acc}, {X}, {Wf}, {cc}")
                else:
                    a(f"v_mfma_f32_32x32x16_bf16 {acc}, {Wf}, {X}, {cc}")
                if nxt is not None:
                    for l in nxt[t]:
                        a(l)
                per = (len(dgs) + (5 - t) - 1) // (5 - t)
                for _ in range(per):
                    if dgs:
                        st, gr = dgs.pop(0)
                        for l in gr:
                            a(l)
                        q.issue(("st", st))
                tgt = min(len(fill), (len(fill) * (t + 1) + 3) // 4)
                while fi < tgt:
                    a(fill[fi]); fi += 1
        stamp() if ch == 0 else None
        E = vX
        kK1, kK2 = vTmp, vTmp + 1
        a(f"v_mov_b32 v{kK1}, {hex(f2u(-2*0.7978845608028654*1.4426950408889634))}")
        a(f"v_mov_b32 v{kK2}, {hex(f2u(-2*0.7978845608028654*1.4426950408889634*0.044715))}")
        a("s_nop 7")
        a("s_nop 3")

        def mlp_epi(t, mt, eb):
            G, U, X = eb, eb + 8, eb + 16
            rs = range(8)
            for r in rs:
                a(f"v_accvgpr_read_b32 v{G+r}, a{aA+16*t+r}")
            for r in rs:
                a(f"v_accvgpr_read_b32 v{U+r}, a{aA+16*t+8+r}")
            for r in rs:
                a(f"v_mul_f32 v{X+r}, v{G+r}, v{G+r}")
            for r in rs:
                a(f"v_fma_f32 v{X+r}, v{X+r}, v{kK2}, v{kK1}")
            for r in rs:
                a(f"v_mul_f32 v{X+r}, v{G+r}, v{X+r}")
            for r in rs:
                a(f"v_exp_f32 v{X+r}, v{X+r}")
            for r in rs:
                a(f"v_mul_f32 v{U+r}, v{G+r}, v{U+r}")
            for r in rs:
                a(f"v_add_f32 v{X+r}, 1.0, v{X+r}")
            for r in rs:
                a(f"v_rcp_f32 v{X+r}, v{X+r}")
            a("s_nop 0")
            for r in rs:
                a(f"v_mul_f32 v{U+r}, v{U+r}, v{X+r}")
            for r in range(4):
                a(f"v_cvt_pk_bf16_f32 v{G+r}, v{U+2*r}, v{U+2*r+1}")
            so, off = (sHoff, mt * 1024) if mt < 4 else (sHoff2, (mt - 4) * 1024)
            a(f"buffer_store_dwordx4 v[{G}:{G+3}], v{vL16}, s[{SWS}:{SWS+3}], s{so} offen offset:{off}")

        if ch == 0:
            mlp_epi(3, 0, E)
            mlp_epi(4, 1, E + 24)
            sQoff, sVoff = sTmp, sTmp2
            a(f"s_lshl_b32 s{sQoff}, s{sCB}, 7")
            a(f"s_add_u32 s{sQoff}, s{sQoff}, s{sRT}")
            a(f"s_lshl_b32 s{sQoff}, s{sQoff}, 10")
            a(f"s_add_u32 s{sVoff}, s{sQoff}, {WS_V}")
            a(f"s_add_u32 s{sTmp3}, s{sQoff}, 65536")
            a(f"s_add_u32 s{sTmp4}, s{sQoff}, {WS_K}")
            a(f"s_add_u32 s{sTb}, s{sQoff}, {WS_K+65536}")
            a(f"s_mov_b32 s{sTl}, {hex(f2u(QSCALE))}")
            for t in range(3):
                for half in range(2):
                    T = E + 48 + 12 * (2 * t + half)
                    for r in range(8):
                        a(f"v_accvgpr_read_b32 v{T+r}, a{aA+16*t+8*half+r}")
                    if t == 0:
                        for r in range(8):
                            a(f"v_mul_f32 v{T+r}, s{sTl}, v{T+r}")
                    P = T + 8
                    for r in range(4):
                        a(f"v_cvt_pk_bf16_f32 v{P+r}, v{T+2*r}, v{T+2*r+1}")
                    if t == 0:
                        so = sQoff if half == 0 else sTmp3
                        a(f"buffer_store_dwordx4 v[{P}:{P+3}], v{vL16}, s[{SWS}:{SWS+3}], s{so} offen")
                    elif t == 1:
                        so = sTmp4 if half == 0 else sTb
                        a(f"buffer_store_dwordx4 v[{P}:{P+3}], v{vL16}, s[{SWS}:{SWS+3}], s{so} offen")
                    else:
                        a(f"buffer_store_dwordx4 v[{P}:{P+3}], v{vVoff}, s[{SWS}:{SWS+3}], s{sVoff} offen offset:{half*512}")
        else:
            for t in range(5):
                mlp_epi(t, 2 + t, E + 24 * t)
        if stamps:
            if ch == 0:
                stamp()
                wg_end(a, SWS, 0, 4, 94)
                a("s_load_dwordx2 s[40:41], s[0:1], 64")
                a("s_waitcnt lgkmcnt(0)")
                a("s_mov_b32 s42, 256")
                a("s_mov_b32 s43, 0x00020000")
                a("s_cmp_lg_u32 s2, 0")
                a(f"s_cbranch_scc1 {name}_end")
                a("s_cmp_lg_u32 s3, 0")
                a(f"s_cbranch_scc1 {name}_end")
                a("v_mov_b32 v1, 0")
                for i_ in range(st_n[0]):
                    a(f"v_mov_b32 v2, s{76+2*i_}")
                    a(f"buffer_store_dword v2, v1, s[40:43], 0 offen offset:{4*i_}")
            else:
                wg_end(a, SWS, 0, 4, 94)
        if ch == 0:
            a("s_endpgm")
    a.label(f"{name}_end")
    a("s_endpgm")
    a.finish(name)
    desc = f"""
.amdhsa_kernel {name}
  .amdhsa_next_free_vgpr 256
  .amdhsa_next_free_sgpr 102
  .amdhsa_accum_offset 176
  .amdhsa_group_segment_fixed_size 0
  .amdhsa_kernarg_size 80
  .amdhsa_user_sgpr_count 2
  .amdhsa_user_sgpr_kernarg_segment_ptr 1
  .amdhsa_system_sgpr_workgroup_id_x 1
.end_amdhsa_kernel
"""
    return desc, K1B_LDS
```

```python
from asmlib import *
from k1 import WS_Q, WS_K, WS_V, WS_O, WS_G, WS_WF, WS_H, WS_SIZE, f2u

K2_LDS = 131072
OFFSET = 40.0
T0 = 8


import os
def gen_k2(a, name, stamps=False):
    NOGEMM = bool(os.environ.get('NOGEMM'))
    sW, sHead, sQB = 3, 4, 5
    SWS = 8
    sTmp, sTmp2, sTmp3 = 12, 13, 14
    sMaskV = 16
    sLoop = 18
    sOoff = 19
    sA, sB = 20, 21
    vLane, vL16, vKa, vVa = 1, 2, 3, 4
    vT = 5
    vQ = 12
    vK = 16
    vV = 24
    vP = 40
    vS = 48
    vC = 80
    vO = 96
    gA = 12
    gB = 44
    gAcc = 80
    gT = 96

    a.raw(f".p2align 8\n.globl {name}\n.type {name},@function\n{name}:")
    a("s_cmp_ge_u32 s2, 256")
    a(f"s_cbranch_scc1 {name}_end")
    if stamps:
        wg_begin(a, 40)
    a("""
    s_load_dwordx2 s[6:7], s[0:1], 72
    v_lshrrev_b32 v2, 6, v0
    v_and_b32 v1, 63, v0
    s_nop 0
    v_readfirstlane_b32 s3, v2
    s_and_b32 s4, s2, 31
    s_lshr_b32 s5, s2, 5
    """)
    a(f"v_lshlrev_b32 v{vL16}, 4, v{vLane}")
    a("s_waitcnt lgkmcnt(0)")
    a(f"s_mov_b32 s{SWS}, s6")
    a(f"s_and_b32 s{SWS+1}, s7, 0xffff")
    a(f"s_mov_b32 s{SWS+2}, {WS_SIZE}")
    a(f"s_mov_b32 s{SWS+3}, 0x00020000")
    if os.environ.get("DUP16"):
        a(f"s_and_b32 s{sW}, s{sW}, 7")
    a(f"s_cmp_ge_u32 s{sW}, 8")
    a(f"s_cbranch_scc1 {name}_gemm")

    PR = os.environ.get("PRIO", "")
    if PR == "a":
        a("s_setprio 2")
    elif PR == "y":
        a(f"s_cmp_ge_u32 s{sW}, 4")
        a(f"s_cbranch_scc0 {name}_noprio")
        a("s_setprio 1")
        a.label(f"{name}_noprio")
    elif PR == "ay":
        a("s_setprio 1")
        a(f"s_cmp_ge_u32 s{sW}, 4")
        a(f"s_cbranch_scc0 {name}_noprio")
        a("s_setprio 2")
        a.label(f"{name}_noprio")
    a(f"s_lshl_b32 s{sTmp}, s{sHead}, 16")
    a(f"s_lshl_b32 s{sTmp2}, s{sW}, 10")
    a(f"s_add_u32 s{sTmp}, s{sTmp}, s{sTmp2}")
    a(f"s_add_u32 s{sTmp3}, s{sTmp}, {WS_K}")
    a(f"s_mov_b32 m0, s{sTmp2}")
    a("s_nop 0")
    a(f"buffer_load_dwordx4 v{vL16}, s[{SWS}:{SWS+3}], s{sTmp3} offen lds")
    a(f"s_add_u32 s{sTmp3}, s{sTmp}, {WS_V}")
    a(f"s_add_u32 m0, s{sTmp2}, 65536")
    a("s_nop 0")
    a(f"buffer_load_dwordx4 v{vL16}, s[{SWS}:{SWS+3}], s{sTmp3} offen lds")
    a(f"s_lshl_b32 s{sOoff}, s{sQB}, 3")
    a(f"s_add_u32 s{sOoff}, s{sOoff}, s{sW}")
    a(f"s_lshl_b32 s{sTmp3}, s{sHead}, 6")
    a(f"s_add_u32 s{sTmp3}, s{sTmp3}, s{sOoff}")
    a(f"s_lshl_b32 s{sTmp3}, s{sTmp3}, 10")
    a(f"buffer_load_dwordx4 v[{vQ}:{vQ+3}], v{vL16}, s[{SWS}:{SWS+3}], s{sTmp3} offen")
    sRest = 24
    a(f"s_mov_b32 s{sRest}, s{sTmp}")
    a(f"s_mov_b32 s{sRest+2}, s{sTmp2}")
    def rest_dma(i):
        a(f"s_add_u32 s{sTmp3}, s{sRest}, {WS_K + i*8192}")
        a(f"s_add_u32 m0, s{sRest+2}, {i*8192}")
        a("s_nop 0")
        a(f"buffer_load_dwordx4 v{vL16}, s[{SWS}:{SWS+3}], s{sTmp3} offen lds")
        a(f"s_add_u32 s{sTmp3}, s{sRest}, {WS_V + i*8192}")
        a(f"s_add_u32 m0, s{sRest+2}, {65536 + i*8192}")
        a("s_nop 0")
        a(f"buffer_load_dwordx4 v{vL16}, s[{SWS}:{SWS+3}], s{sTmp3} offen lds")
    a(f"s_lshl_b32 s{sOoff}, s{sOoff}, 5")
    a(f"s_add_u32 s{sOoff}, s{sOoff}, s{sHead}")
    a(f"s_lshl_b32 s{sOoff}, s{sOoff}, 10")
    a(f"s_add_u32 s{sOoff}, s{sOoff}, {WS_O}")
    a(f"s_mov_b32 s{sMaskV}, 0x0000ffff")
    a(f"s_mov_b32 s{sMaskV+1}, 0x0000ffff")
    a(f"v_mov_b32 v{vKa}, v{vL16}")
    a(f"v_lshrrev_b32 v{vT}, 5, v{vLane}")
    a(f"v_and_b32 v{vT+1}, 15, v{vLane}")
    a(f"v_lshlrev_b32 v{vVa}, 8, v{vT}")
    a(f"v_lshl_add_u32 v{vVa}, v{vT+1}, 4, v{vVa}")
    a(f"v_add_u32 v{vVa}, 65536, v{vVa}")
    a(f"v_and_b32 v{vT}, 31, v{vLane}")
    a(f"v_and_b32 v{vT+1}, 27, v{vT}")
    a(f"v_mov_b32 v{vT+2}, 0x3f803f80")
    a(f"v_cmp_eq_u32 vcc, 16, v{vT+1}")
    a("s_nop 1")
    a(f"v_cndmask_b32 v{vT}, 0, v{vT+2}, vcc")
    for r in range(16):
        a(f"v_mov_b32 v{vV+r}, v{vT}")
    a("s_waitcnt vmcnt(0)")
    a("s_barrier")
    if stamps:
        a("s_memtime s[50:51]")

    mx = vT
    kf = [vK, vK + 4, vP, vP + 4]
    sb = [vS, vS + 16, vC, vO]
    for t in range(4):
        a(f"ds_read_b128 v[{kf[t]}:{kf[t]+3}], v{vKa} offset:{t*1024}")
    for i in range(1, 4):
        rest_dma(i)
    a("s_waitcnt lgkmcnt(0)")
    for t in range(4):
        a(f"v_mfma_f32_32x32x16_bf16 v[{sb[t]}:{sb[t]+15}], v[{kf[t]}:{kf[t]+3}], v[{vQ}:{vQ+3}], 0")
    for i in range(4, 8):
        rest_dma(i)
    first = True
    for t in range(4):
        for r in range(0, 16, 2):
            c = f"v{sb[t]+r}" if first else f"v{mx}"
            first = False
            a(f"v_max3_f32 v{mx}, v{sb[t]+r}, v{sb[t]+r+1}, {c}")
    for r in range(16):
        a(f"v_mov_b32 v{vO+r}, 0")
    a(f"""
    s_nop 0
    v_mov_b32 v{mx+1}, v{mx}
    s_nop 1
    v_permlane32_swap_b32 v{mx}, v{mx+1}
    s_nop 1
    v_max_f32 v{mx}, v{mx}, v{mx+1}
    v_add_f32 v{mx}, {hex(f2u(OFFSET))}, v{mx}
    v_sub_f32 v{mx}, 0, v{mx}
    """)
    a(f"ds_read_b128 v[{vK}:{vK+3}], v{vKa} offset:0")
    a(f"ds_read_b128 v[{vK+4}:{vK+7}], v{vKa} offset:1024")
    a(f"s_mov_b64 exec, s[{sMaskV}:{sMaskV+1}]")
    a(f"ds_read_b128 v[{vV}:{vV+3}], v{vVa} offset:0")
    a(f"ds_read_b128 v[{vV+4}:{vV+7}], v{vVa} offset:512")
    a("s_mov_b64 exec, -1")
    for r in range(16):
        a(f"v_mov_b32 v{vC+r}, v{mx}")
    a("s_nop 0")
    a("s_waitcnt lgkmcnt(0)")
    a(f"v_mfma_f32_32x32x16_bf16 v[{vS}:{vS+15}], v[{vK}:{vK+3}], v[{vQ}:{vQ+3}], v[{vC}:{vC+15}]")
    a("s_nop 7")
    a("s_nop 3")

    XF = os.environ.get("XF", "")
    a_real = a
    def tile(j, barrier=False):
        def a(l):
            if "P" in XF and l.startswith("v_mfma") and f"v[{vO}:" in l.split(",")[0]:
                return
            if "S" in XF and l.startswith("v_mfma") and f"v[{vO}:" not in l.split(",")[0]:
                return
            if "L" in XF and (l.startswith("ds_read") or "exec" in l):
                return
            if "E" in XF and l.startswith("v_exp"):
                return
            if "C" in XF and l.startswith("v_cvt"):
                return
            a_real(l)
        cur, nxt = j % 2, 1 - j % 2
        S = vS + 16 * cur
        Sn = vS + 16 * nxt
        if barrier is not False:
            a(f"s_waitcnt vmcnt({barrier})")
            a("s_barrier")
        a("s_waitcnt lgkmcnt(0)")
        a(f"v_mfma_f32_32x32x16_bf16 v[{Sn}:{Sn+15}], v[{vK+4*nxt}:{vK+4*nxt+3}], v[{vQ}:{vQ+3}], v[{vC}:{vC+15}]")
        a(f"ds_read_b128 v[{vK+4*cur}:{vK+4*cur+3}], v{vKa} offset:{(j+2)*1024}")
        a(f"s_mov_b64 exec, s[{sMaskV}:{sMaskV+1}]")
        a(f"ds_read_b128 v[{vV+8*nxt}:{vV+8*nxt+3}], v{vVa} offset:{(j+1)*1024}")
        a(f"ds_read_b128 v[{vV+8*nxt+4}:{vV+8*nxt+7}], v{vVa} offset:{(j+1)*1024+512}")
        a("s_mov_b64 exec, -1")
        for r in range(8):
            a(f"v_exp_f32 v{S+r}, v{S+r}")
        for r in range(4):
            a(f"v_cvt_pk_bf16_f32 v{vP+r}, v{S+2*r}, v{S+2*r+1}")
        for r in range(8, 10):
            a(f"v_exp_f32 v{S+r}, v{S+r}")
        a(f"v_mfma_f32_32x32x16_bf16 v[{vO}:{vO+15}], v[{vV+8*cur}:{vV+8*cur+3}], v[{vP}:{vP+3}], v[{vO}:{vO+15}]")
        for r in range(10, 16):
            a(f"v_exp_f32 v{S+r}, v{S+r}")
        for r in range(4, 8):
            a(f"v_cvt_pk_bf16_f32 v{vP+r}, v{S+2*r}, v{S+2*r+1}")
        a("s_nop 1")
        a(f"v_mfma_f32_32x32x16_bf16 v[{vO}:{vO+15}], v[{vV+8*cur+4}:{vV+8*cur+7}], v[{vP+4}:{vP+7}], v[{vO}:{vO+15}]")

    for blk in range(3):
        for j in range(8):
            bar = False
            if blk == 0 and j == 5:
                bar = 10
            if blk == 2 and j == 5:
                bar = 0
            tile(j, barrier=bar)
        a(f"v_add_u32 v{vKa}, 8192, v{vKa}")
        a(f"v_add_u32 v{vVa}, 8192, v{vVa}")
    if stamps:
        a("s_memtime s[52:53]")
    a(f"s_mov_b32 s{sLoop}, 5")
    a.label(f"{name}_aloop")
    m = a.mark()
    for j in range(8):
        tile(j)
    a(f"v_add_u32 v{vKa}, 8192, v{vKa}")
    a(f"v_add_u32 v{vVa}, 8192, v{vVa}")
    a(f"s_sub_u32 s{sLoop}, s{sLoop}, 1")
    a(f"s_cmp_lg_u32 s{sLoop}, 0")
    a(f"s_cbranch_scc1 {name}_aloop")
    a.check_loop(m, name + "_aloop")
    if stamps:
        a("s_memtime s[54:55]")
        a("s_waitcnt lgkmcnt(0)")
        a("s_load_dwordx2 s[56:57], s[0:1], 64")
        a("s_waitcnt lgkmcnt(0)")
        a("s_mov_b32 s58, 256")
        a("s_mov_b32 s59, 0x00020000")
        a("s_lshl_b32 s60, s3, 4")
        a(f"v_mov_b32 v{vT+1}, s40")
        a(f"v_mov_b32 v{vT+2}, s50")
        a(f"v_mov_b32 v{vT+3}, s52")
        a(f"v_mov_b32 v{vT+4}, s54")
        a(f"v_mov_b32 v{vT+5}, 0")
        a("s_cmp_lg_u32 s2, 0")
        a(f"s_cbranch_scc1 {name}_nost")
        a(f"buffer_store_dwordx4 v[{vT+1}:{vT+4}], v{vT+5}, s[56:59], s60 offen")
        a.label(f"{name}_nost")
    a("s_nop 7")
    a("s_nop 7")
    a(f"v_mov_b32 v{vT}, {hex(f2u(float(os.environ.get('THR', 2.0**100))))}")
    a(f"v_cmp_lt_f32 vcc, v{vO+8}, v{vT}")
    a("s_nop 1")
    a("s_cmp_eq_u64 vcc, -1")
    a(f"s_cbranch_scc0 {name}_slow")
    a.label(f"{name}_fin")
    a(f"v_rcp_f32 v{vT}, v{vO+8}")
    a("s_nop 0")
    for r in range(8):
        a(f"v_mul_f32 v{vO+r}, v{vO+r}, v{vT}")
    for r in range(4):
        a(f"v_cvt_pk_bf16_f32 v{vP+r}, v{vO+2*r}, v{vO+2*r+1}")
    a(f"buffer_store_dwordx4 v[{vP}:{vP+3}], v{vL16}, s[{SWS}:{SWS+3}], s{sOoff} offen")
    if stamps:
        wg_end(a, SWS, 1, 4, 40)
    a("s_endpgm")

    a.label(f"{name}_slow")
    mrun, mnew, al = vT, vT + 1, vT + 2
    a(f"v_mov_b32 v{vKa}, v{vL16}")
    a(f"v_add_u32 v{vVa}, {-65536 & 0xffffffff}, v{vVa}")
    a(f"v_mov_b32 v{mrun}, {hex(f2u(-3.0e38))}")
    for r in range(16):
        a(f"v_mov_b32 v{vO+r}, 0")
    a(f"s_mov_b32 s{sLoop}, 64")
    a.label(f"{name}_sloop")
    m = a.mark()
    S = vS
    a(f"ds_read_b128 v[{vK}:{vK+3}], v{vKa}")
    a(f"s_mov_b64 exec, s[{sMaskV}:{sMaskV+1}]")
    a(f"ds_read_b128 v[{vV}:{vV+3}], v{vVa}")
    a(f"ds_read_b128 v[{vV+4}:{vV+7}], v{vVa} offset:512")
    a("s_mov_b64 exec, -1")
    a("s_waitcnt lgkmcnt(0)")
    a(f"v_mfma_f32_32x32x16_bf16 v[{S}:{S+15}], v[{vK}:{vK+3}], v[{vQ}:{vQ+3}], 0")
    a("s_nop 7")
    a("s_nop 7")
    a(f"v_mov_b32 v{mnew}, v{mrun}")
    for r in range(0, 16, 2):
        a(f"v_max3_f32 v{mnew}, v{S+r}, v{S+r+1}, v{mnew}")
    a(f"""
    s_nop 0
    v_mov_b32 v{al}, v{mnew}
    s_nop 1
    v_permlane32_swap_b32 v{mnew}, v{al}
    s_nop 1
    v_max_f32 v{mnew}, v{mnew}, v{al}
    v_sub_f32 v{al}, v{mrun}, v{mnew}
    v_exp_f32 v{al}, v{al}
    v_mov_b32 v{mrun}, v{mnew}
    """)
    for r in range(16):
        a(f"v_sub_f32 v{S+r}, v{S+r}, v{mnew}")
    for r in range(16):
        a(f"v_exp_f32 v{S+r}, v{S+r}")
    for r in range(16):
        a(f"v_mul_f32 v{vO+r}, v{vO+r}, v{al}")
    for r in range(8):
        a(f"v_cvt_pk_bf16_f32 v{vP+r}, v{S+2*r}, v{S+2*r+1}")
    a("s_nop 1")
    a(f"v_mfma_f32_32x32x16_bf16 v[{vO}:{vO+15}], v[{vV}:{vV+3}], v[{vP}:{vP+3}], v[{vO}:{vO+15}]")
    a(f"v_mfma_f32_32x32x16_bf16 v[{vO}:{vO+15}], v[{vV+4}:{vV+7}], v[{vP+4}:{vP+7}], v[{vO}:{vO+15}]")
    a(f"v_add_u32 v{vKa}, 1024, v{vKa}")
    a(f"v_add_u32 v{vVa}, 1024, v{vVa}")
    a("s_nop 7")
    a("s_nop 7")
    a(f"s_sub_u32 s{sLoop}, s{sLoop}, 1")
    a(f"s_cmp_lg_u32 s{sLoop}, 0")
    a(f"s_cbranch_scc1 {name}_sloop")
    a.check_loop(m, name + "_sloop")
    a(f"s_branch {name}_fin")

    a.label(f"{name}_gemm")
    if NOGEMM:
        a("s_barrier")
        a("s_barrier")
        a("s_barrier")
        a("s_endpgm")
    a(f"s_mov_b32 s25, s{sW}")
    a(f"s_sub_u32 s{sW}, s{sW}, 8")
    a(f"s_and_b32 s{sTmp}, s2, 7")
    a(f"s_lshl_b32 s{sTmp}, s{sTmp}, 2")
    a(f"s_bfe_u32 s{sTmp2}, s2, 0x20003")
    a(f"s_add_u32 s{sTmp}, s{sTmp}, s{sTmp2}")
    a(f"s_lshl_b32 s{sTmp}, s{sTmp}, 1")
    a(f"s_lshr_b32 s{sTmp2}, s{sW}, 1")
    a(f"s_add_u32 s{sTmp}, s{sTmp}, s{sTmp2}")
    a(f"s_lshr_b32 s{sTmp2}, s2, 5")
    a(f"s_lshl_b32 s{sTmp2}, s{sTmp2}, 1")
    a(f"s_and_b32 s{sTmp3}, s{sW}, 1")
    a(f"s_add_u32 s{sTmp2}, s{sTmp2}, s{sTmp3}")
    a(f"s_mul_i32 s{sA}, s{sTmp2}, {144*1024}")
    a(f"s_add_u32 s{sA}, s{sA}, {WS_WF}")
    a(f"s_mul_i32 s{sB}, s{sTmp}, {112*1024}")
    a(f"s_add_u32 s{sB}, s{sB}, {WS_H}")
    a(f"s_lshl_b32 s{sOoff}, s{sTmp}, 4")
    a(f"s_add_u32 s{sOoff}, s{sOoff}, s{sTmp2}")
    a(f"s_lshl_b32 s{sOoff}, s{sOoff}, 11")
    a(f"s_add_u32 s{sOoff}, s{sOoff}, {WS_G}")
    sA2, sB2 = 22, 23

    def gload(k):
        sa, sb = (sA, sB) if k < 4 else (sA2, sB2)
        a(f"buffer_load_dwordx4 v[{gA+4*k}:{gA+4*k+3}], v{vL16}, s[{SWS}:{SWS+3}], s{sa} offen offset:{(k%4)*1024}")
        a(f"buffer_load_dwordx4 v[{gB+4*k}:{gB+4*k+3}], v{vL16}, s[{SWS}:{SWS+3}], s{sb} offen offset:{(k%4)*1024}")

    def adv():
        a(f"s_add_u32 s{sA}, s{sA}, 8192")
        a(f"s_add_u32 s{sB}, s{sB}, 8192")
        a(f"s_add_u32 s{sA2}, s{sA2}, 8192")
        a(f"s_add_u32 s{sB2}, s{sB2}, 8192")

    a(f"s_add_u32 s{sA2}, s{sA}, 4096")
    a(f"s_add_u32 s{sB2}, s{sB}, 4096")
    a("s_barrier")
    for k in range(8):
        gload(k)
    adv()
    acc = f"v[{gAcc}:{gAcc+15}]"

    def gblock(first=False, last=False):
        for k in range(8):
            n = 14 - 2 * k if last else 14
            a(f"s_waitcnt vmcnt({n})")
            cc = "0" if (first and k == 0) else acc
            a(f"v_mfma_f32_32x32x16_bf16 {acc}, v[{gA+4*k}:{gA+4*k+3}], v[{gB+4*k}:{gB+4*k+3}], {cc}")
            if not last:
                gload(k)
        if not last:
            adv()

    gblock(first=True)
    a("s_barrier")
    gblock()
    gblock()
    gblock()
    a("s_barrier")
    a(f"s_mov_b32 s{sLoop}, 9")
    a.label(f"{name}_gloop")
    m = a.mark()
    gblock()
    a(f"s_sub_u32 s{sLoop}, s{sLoop}, 1")
    a(f"s_cmp_lg_u32 s{sLoop}, 0")
    a(f"s_cbranch_scc1 {name}_gloop")
    a.check_loop(m, name + "_gloop")
    gblock(last=True)
    a(f"s_mov_b32 s{sTmp}, {hex(f2u(-1.4426950408889634))}")
    a("s_nop 7")
    a("s_nop 3")
    X = gT
    for r in range(16):
        a(f"v_mul_f32 v{X+r}, s{sTmp}, v{gAcc+r}")
    for r in range(16):
        a(f"v_exp_f32 v{X+r}, v{X+r}")
    for r in range(16):
        a(f"v_add_f32 v{X+r}, 1.0, v{X+r}")
    for r in range(16):
        a(f"v_rcp_f32 v{X+r}, v{X+r}")
    for r in range(16):
        a(f"v_mul_f32 v{X+r}, v{X+r}, v{gAcc+r}")
    for r in range(8):
        a(f"v_cvt_pk_bf16_f32 v{gA+r}, v{X+2*r}, v{X+2*r+1}")
    a(f"buffer_store_dwordx4 v[{gA}:{gA+3}], v{vL16}, s[{SWS}:{SWS+3}], s{sOoff} offen")
    a(f"buffer_store_dwordx4 v[{gA+4}:{gA+7}], v{vL16}, s[{SWS}:{SWS+3}], s{sOoff} offen offset:1024")
    if stamps:
        a(f"s_mov_b32 s{sW}, s25")
        wg_end(a, SWS, 1, 100, 40)
    a.label(f"{name}_end")
    a("s_endpgm")
    a.finish(name)
    desc = f"""
.amdhsa_kernel {name}
  .amdhsa_next_free_vgpr 112
  .amdhsa_next_free_sgpr 64
  .amdhsa_accum_offset 112
  .amdhsa_group_segment_fixed_size 0
  .amdhsa_kernarg_size 80
  .amdhsa_user_sgpr_count 2
  .amdhsa_user_sgpr_kernarg_segment_ptr 1
  .amdhsa_system_sgpr_workgroup_id_x 1
.end_amdhsa_kernel
"""
    return desc, K2_LDS
```

```python
from asmlib import *
from k1 import WS_Q, WS_K, WS_V, WS_O, WS_G, WS_WF, WS_H, WS_SIZE, QSCALE, f2u, VQ

XPITCH = 1040
SLOT = 20736
UPO = 7296
QO = 14592
SLOT6 = 128 * XPITCH
DUMMY = SLOT6 + SLOT
EXCH = DUMMY + 1024
TSCR = 6 * SLOT
K1B_LDS = EXCH + 2048


def slot_addr(s):
    k = (s + 6) % 7
    return SLOT6 if k == 6 else k * SLOT


import os
def gen_k1b(a, name, stamps=False):
    sW, sRB, sCB, sRG, sCH, sRT = 3, 4, 5, 6, 7, 59
    SX, SWS, ST, SWS2 = 8, 12, 16, 20
    SD = 24
    sDl = 36
    sDs = 60
    sDst = 64
    sOnes, sMask = 67, 68
    sTmp, sTmp2, sTmp3, sTmp4 = 54, 55, 56, 57
    sHoff, sHoff2, sTb, sTbase, sTl = 70, 71, 72, 73, 74
    vLane, vL16, vXa, vVoff = 1, 2, 3, 4
    vD = 5
    vRM, vRQ = 8, 9
    vCM, vCQ = 10, 11
    vR, vC = 12, 13
    vTmp = 14
    vW = 22
    vX = 42
    vT0, vT1 = 170, 171
    vS = 172
    aA = 0

    st_n = [0]

    def stamp():
        if not stamps:
            return
        k = 76 + 2 * st_n[0]
        st_n[0] += 1
        a(f"s_memtime s[{k}:{k+1}]")
        a("s_waitcnt lgkmcnt(0)")

    q = VQ()
    a.raw(f".p2align 8\n.globl {name}\n.type {name},@function\n{name}:")
    a("s_cmp_ge_u32 s2, 256")
    a(f"s_cbranch_scc1 {name}_end")
    if stamps:
        wg_begin(a, 94)
    if os.environ.get("PF", "0") == "1":
        a("s_getpc_b64 s[98:99]")
        a.label(f"{name}_pf")
        a("v_lshlrev_b32 v3, 4, v0")
        for i in range(5):
            a(f"v_add_u32 v4, {i*8192}, v3")
            a.raw(f"    v_min_u32 v4, (k3_kernel_end - {name}_pf - 16), v4")
            a(f"global_load_dwordx4 v[{44+4*i}:{44+4*i+3}], v4, s[98:99]")
            q.issue()
    a("""
    s_load_dwordx4 s[40:43], s[0:1], 0
    s_load_dwordx4 s[44:47], s[0:1], 32
    s_load_dwordx2 s[48:49], s[0:1], 16
    s_load_dwordx2 s[50:51], s[0:1], 48
    s_load_dwordx2 s[52:53], s[0:1], 72
    v_lshrrev_b32 v2, 6, v0
    v_and_b32 v1, 63, v0
    s_nop 0
    v_readfirstlane_b32 s3, v2
    """)
    RM = os.environ.get("RMAP", "4")
    if RM == "4":
        a("""
    s_bfe_u32 s4, s2, 0x20001
    s_lshl_b32 s4, s4, 2
    s_lshr_b32 s5, s2, 6
    s_add_u32 s4, s4, s5
    s_and_b32 s5, s2, 1
    s_lshl_b32 s5, s5, 3
    s_bfe_u32 s6, s2, 0x30003
    s_add_u32 s5, s5, s6
    """)
    elif RM == "8":
        a("""
    s_bfe_u32 s4, s2, 0x10002
    s_lshl_b32 s4, s4, 3
    s_lshr_b32 s5, s2, 5
    s_add_u32 s4, s4, s5
    s_and_b32 s5, s2, 3
    s_lshl_b32 s5, s5, 2
    s_bfe_u32 s6, s2, 0x20003
    s_add_u32 s5, s5, s6
    """)
    else:
        a("""
    s_lshr_b32 s4, s2, 4
    s_and_b32 s5, s2, 15
    """)
    a("""
    s_and_b32 s6, s3, 3
    s_lshr_b32 s7, s3, 2
    """)
    a(f"s_mov_b32 s{sOnes}, 0x3f803f80")
    a(f"s_mov_b32 s{sMask}, 0xffff0000")
    a(f"s_lshl_b32 s{sRT}, s{sRB}, 2")
    a(f"s_add_u32 s{sRT}, s{sRT}, s{sRG}")
    a(f"v_lshlrev_b32 v{vL16}, 4, v{vLane}")
    t0, t1, t2, t3 = vTmp, vTmp + 1, vTmp + 2, vTmp + 3
    a(f"v_and_b32 v{t0}, 31, v{vLane}")
    a(f"v_lshrrev_b32 v{t1}, 5, v{vLane}")
    a(f"s_mul_i32 s{sTmp}, s{sRG}, {32*XPITCH}")
    a(f"v_mul_u32_u24 v{vXa}, {XPITCH}, v{t0}")
    a(f"v_lshl_add_u32 v{vXa}, v{t1}, 5, v{vXa}")
    a(f"v_add_u32 v{vXa}, s{sTmp}, v{vXa}")
    a(f"v_bfe_u32 v{t2}, v{vLane}, 4, 1")
    a(f"v_lshlrev_b32 v{vVoff}, 16, v{t2}")
    a(f"v_lshl_add_u32 v{vVoff}, v{t1}, 8, v{vVoff}")
    a(f"v_and_b32 v{t2}, 15, v{vLane}")
    a(f"v_lshl_add_u32 v{vVoff}, v{t2}, 4, v{vVoff}")
    a(f"v_bfe_u32 v{t2}, v{vLane}, 2, 2")
    a(f"v_lshl_add_u32 v{t2}, v{t1}, 4, v{t2}")
    a(f"v_and_b32 v{t3}, 3, v{vLane}")
    a(f"v_bfe_u32 v{t0}, v{vLane}, 4, 1")
    a(f"v_mul_u32_u24 v{vRM}, 224, v{t2}")
    a(f"v_lshl_add_u32 v{vRM}, v{t3}, 3, v{vRM}")
    a(f"v_mul_u32_u24 v{vRQ}, {UPO}, v{t0}")
    a(f"v_add_u32 v{vRM}, v{vRM}, v{vRQ}")
    a(f"v_lshlrev_b32 v{vRQ}, 6, v{t2}")
    a(f"v_lshl_add_u32 v{vRQ}, v{t3}, 3, v{vRQ}")
    a(f"v_lshl_add_u32 v{vRQ}, v{t0}, 5, v{vRQ}")
    a(f"v_add_u32 v{vRQ}, {QO}, v{vRQ}")
    a("s_waitcnt lgkmcnt(0)")

    def srd(d, lo, size):
        a(f"s_mov_b32 s{d}, s{lo}")
        a(f"s_and_b32 s{d+1}, s{lo+1}, 0xffff")
        a(f"s_mov_b32 s{d+2}, {size}")
        a(f"s_mov_b32 s{d+3}, 0x00020000")
    srd(SX, 40, 2048 * 1024)
    stamp()
    a(f"s_lshl_b32 s{sTmp}, s{sRB}, 17")
    a(f"s_lshl_b32 s{sTmp2}, s{sW}, 14")
    a(f"s_add_u32 s{sTmp}, s{sTmp}, s{sTmp2}")
    a(f"s_mul_i32 s{sTmp2}, s{sW}, {16*XPITCH}")
    for r in range(16):
        a(f"s_add_u32 m0, s{sTmp2}, {r*XPITCH}")
        a(f"s_add_u32 s{sTmp3}, s{sTmp}, {r*1024}")
        a(f"buffer_load_dwordx4 v{vL16}, s[{SX}:{SX+3}], s{sTmp3} offen lds")
        q.issue("x")
    srd(SWS, 52, WS_SIZE)

    for j in range(3):
        sP = sTmp
        a(f"s_add_u32 s{sP}, s{sW}, {8*j}")
        d = SD + 4 * j
        a(f"s_cmp_lt_u32 s{sP}, 7")
        a(f"s_cselect_b32 s{d}, s44, s46")
        a(f"s_cselect_b32 s{d+1}, s45, s47")
        a(f"s_cselect_b32 s{sTmp2}, 0, 7")
        a(f"s_cselect_b32 s{sTmp3}, 0, {UPO}")
        a(f"s_sub_u32 s{sTmp2}, s{sP}, s{sTmp2}")
        a(f"s_lshl_b32 s{sTmp4}, s{sTmp2}, 10")
        a(f"s_add_u32 s{sDl+j}, s{sTmp3}, s{sTmp4}")
        a(f"s_lshl_b32 s{sTmp2}, s{sTmp2}, 6")
        a(f"s_sub_u32 s{sTmp3}, s{sP}, 14")
        a(f"s_cmp_ge_u32 s{sP}, 14")
        a(f"s_cselect_b32 s{d}, s42, s{d}")
        a(f"s_cselect_b32 s{d+1}, s43, s{d+1}")
        a(f"s_and_b32 s{d+1}, s{d+1}, 0xffff")
        a(f"s_mov_b32 s{d+3}, 0x00020000")
        a(f"s_lshl_b32 s{sTmp4}, s{sTmp3}, 10")
        a(f"s_add_u32 s{sTmp4}, s{sTmp4}, {QO}")
        a(f"s_cmp_ge_u32 s{sP}, 14")
        a(f"s_cselect_b32 s{sDl+j}, s{sTmp4}, s{sDl+j}")
        a(f"s_cselect_b32 s{sDst+j}, {32*3072}, s98") if False else None
        a(f"s_mov_b32 s{sDst+j}, {32*3584}")
        a(f"s_cselect_b32 s{sTmp4}, 1, 0")
        a(f"s_cmp_eq_u32 s{sTmp4}, 1")
        a(f"s_cbranch_scc0 {name}_p{j}_mlp")
        a(f"s_mov_b32 s{sDst+j}, {32*3072}")
        a(f"s_mov_b32 s{d+2}, {512*3072}")
        a(f"s_and_b32 s{sTmp2}, s{sTmp3}, 1")
        a(f"s_lshl_b32 s{sTmp2}, s{sTmp2}, 4")
        a(f"v_lshrrev_b32 v{t0}, 2, v{vLane}")
        a(f"v_add_u32 v{t0}, s{sTmp2}, v{t0}")
        a(f"v_mul_u32_u24 v{vD+j}, 3072, v{t0}")
        a(f"v_and_b32 v{t0}, 3, v{vLane}")
        a(f"v_lshl_add_u32 v{vD+j}, v{t0}, 4, v{vD+j}")
        a(f"s_lshr_b32 s{sTmp2}, s{sTmp3}, 1")
        a(f"s_lshl_b32 s{sTmp2}, s{sTmp2}, 10")
        a(f"s_lshl_b32 s{sTmp4}, s{sCB}, 6")
        a(f"s_add_u32 s{sTmp2}, s{sTmp2}, s{sTmp4}")
        a(f"v_add_u32 v{vD+j}, s{sTmp2}, v{vD+j}")
        a(f"s_cmp_ge_u32 s{sP}, 20")
        a(f"s_cselect_b32 s{d+2}, 0, s{d+2}")
        a(f"s_branch {name}_p{j}_done")
        a.label(f"{name}_p{j}_mlp")
        a(f"s_mov_b32 s{d+2}, {512*3584}")
        a(f"v_add_u32 v{t0}, s{sTmp2}, v{vLane}")
        a(f"v_mul_u32_u24 v{t1}, 4682, v{t0}")
        a(f"v_lshrrev_b32 v{t1}, 16, v{t1}")
        a(f"v_mul_u32_u24 v{vD+j}, 14, v{t1}")
        a(f"v_sub_u32 v{t0}, v{t0}, v{vD+j}")
        a(f"v_mul_u32_u24 v{vD+j}, 3584, v{t1}")
        a(f"v_lshl_add_u32 v{vD+j}, v{t0}, 4, v{vD+j}")
        a(f"s_mul_i32 s{sTmp4}, s{sCB}, 224")
        a(f"v_add_u32 v{vD+j}, s{sTmp4}, v{vD+j}")
        a.label(f"{name}_p{j}_done")
        a(f"s_mov_b32 s{sDs+j}, 0")
    sDum = 75
    a(f"s_cmp_ge_u32 s{sW}, 4")
    a(f"s_cselect_b32 s{sDum}, 1, 0")

    def dma_stage(s):
        out = []
        base = slot_addr(s)
        for j in range(3):
            g = []
            if j < 2:
                g.append(f"s_add_u32 m0, s{sDl+j}, {base}")
            else:
                g.append(f"s_add_u32 s{sTmp4}, s{sDl+j}, {base}")
                g.append(f"s_cmp_eq_u32 s{sDum}, 1")
                g.append(f"s_cselect_b32 m0, {DUMMY}, s{sTmp4}")
            g.append("s_nop 0")
            g.append(f"buffer_load_dwordx4 v{vD+j}, s[{SD+4*j}:{SD+4*j+3}], s{sDs+j} offen lds")
            g.append(f"s_add_u32 s{sDs+j}, s{sDs+j}, s{sDst+j}")
            out.append(g)
        return out

    for g in dma_stage(0):
        for l in g:
            a(l)
    q.issue(("st", 0), 3)
    if os.environ.get("WPF", "0") == "1":
        SG, SU, SQ = 76 + 14, 16, 20
        for d, lo, size in ((16, 46, 512 * 3584), (20, 42, 512 * 3072), (44, 44, 512 * 3584)):
            a(f"s_mov_b32 s{d}, s{lo}")
            a(f"s_and_b32 s{d+1}, s{lo+1}, 0xffff")
            a(f"s_mov_b32 s{d+2}, {size}")
            a(f"s_mov_b32 s{d+3}, 0x00020000")
        a(f"v_lshrrev_b32 v{t0}, 2, v{vLane}")
        a(f"v_mul_u32_u24 v{t1}, 3584, v{t0}")
        a(f"v_and_b32 v{t2}, 3, v{vLane}")
        a(f"v_lshl_add_u32 v{t1}, v{t2}, 6, v{t1}")
        a(f"s_mul_i32 s{sTmp}, s{sCB}, 224")
        a(f"s_mul_i32 s{sTmp2}, s{sW}, {64*3584}")
        a(f"s_add_u32 s{sTmp}, s{sTmp}, s{sTmp2}")
        a(f"v_add_u32 v{t1}, s{sTmp}, v{t1}")
        for j in range(4):
            a(f"s_mov_b32 s{sTmp2}, {j*16*3584}")
            a(f"buffer_load_dword v175, v{t1}, s[44:47], s{sTmp2} offen")
            a(f"buffer_load_dword v175, v{t1}, s[16:19], s{sTmp2} offen")
            q.issue(None, 2)
        a(f"s_lshl_b32 s{sTmp}, s{sW}, 6")
        a(f"v_add_u32 v{t0}, s{sTmp}, v{vLane}")
        a(f"v_mul_u32_u24 v{t1}, 3072, v{t0}")
        a(f"s_lshl_b32 s{sTmp}, s{sCB}, 6")
        a(f"v_add_u32 v{t1}, s{sTmp}, v{t1}")
        for t in range(3):
            a(f"buffer_load_dword v175, v{t1}, s[20:23], 0 offen offset:{t*1024}")
            q.issue()

    vOne = vW
    for r in range(4):
        a(f"v_mov_b32 v{vOne+r}, s{sOnes}")
    a(f"s_waitcnt vmcnt({q.wait('x')})")
    a("s_barrier")
    stamp()
    for f in range(32):
        a(f"ds_read_b128 v[{vX+4*f}:{vX+4*f+3}], v{vXa} offset:{(f//2)*64 + (f%2)*16}")
    S2 = vTmp
    a(f"s_cmp_eq_u32 s{sCH}, 1")
    a(f"s_cbranch_scc1 {name}_stat1")
    for chv in range(2):
        if chv == 1:
            a.label(f"{name}_stat1")
        a("s_waitcnt lgkmcnt(0)") if chv == 1 else a("s_waitcnt lgkmcnt(15)")
        for k, f in enumerate(range(16 * chv, 16 * chv + 16)):
            if chv == 0 and k > 0:
                a(f"s_waitcnt lgkmcnt({max(0, 15 - k)})") if False else None
            cc = "0" if k == 0 else f"a[{aA}:{aA+15}]"
            if chv == 0 and k == 0:
                a("s_waitcnt lgkmcnt(0)")
            a(f"v_mfma_f32_32x32x16_bf16 a[{aA}:{aA+15}], v[{vOne}:{vOne+3}], v[{vX+4*f}:{vX+4*f+3}], {cc}")
            for r in range(4 * f, 4 * f + 4):
                kk = r % 4
                c2 = "0" if k == 0 else f"v{S2+kk}"
                a(f"v_dot2_f32_bf16 v{S2+kk}, v{vX+r}, v{vX+r}, {c2}")
        if chv == 0:
            a(f"s_branch {name}_stat_done")
    a.label(f"{name}_stat_done")
    a(f"s_lshl_b32 s{sTmp}, s{sRG}, 9")
    a(f"s_lshl_b32 s{sTmp2}, s{sCH}, 8")
    a(f"s_add_u32 s{sTmp3}, s{sTmp}, s{sTmp2}")
    a(f"s_xor_b32 s{sTmp2}, s{sTmp2}, 256")
    a(f"s_add_u32 s{sTmp}, s{sTmp}, s{sTmp2}")
    a(f"v_and_b32 v{vS}, 31, v{vLane}")
    a(f"v_lshlrev_b32 v{vS}, 3, v{vS}")
    a(f"v_add_u32 v{vS}, {EXCH}, v{vS}")
    a(f"v_add_u32 v{vS+1}, s{sTmp}, v{vS}")
    a(f"v_add_u32 v{vS}, s{sTmp3}, v{vS}")
    a(f"""
    s_nop 3
    v_add_f32 v{S2}, v{S2}, v{S2+1}
    v_add_f32 v{S2+2}, v{S2+2}, v{S2+3}
    s_nop 0
    v_add_f32 v{S2}, v{S2}, v{S2+2}
    s_nop 0
    v_mov_b32 v{S2+1}, v{S2}
    s_nop 1
    v_permlane32_swap_b32 v{S2}, v{S2+1}
    s_nop 1
    v_add_f32 v{S2+1}, v{S2}, v{S2+1}
    v_accvgpr_read_b32 v{S2}, a{aA}
    s_nop 0
    ds_write_b64 v{vS}, v[{S2}:{S2+1}]
    s_waitcnt lgkmcnt(0)
    s_barrier
    ds_read_b64 v[{S2+2}:{S2+3}], v{vS+1}
    """)
    for st in (1, 2):
        for g in dma_stage(st):
            for l in g:
                a(l)
        q.issue(("st", st), 3)
    S1 = S2 + 4
    a(f"""
    s_waitcnt lgkmcnt(0)
    v_add_f32 v{S1}, v{S2}, v{S2+2}
    v_add_f32 v{S2}, v{S2+1}, v{S2+3}
    v_mul_f32 v{S1}, {hex(f2u(1/512))}, v{S1}
    v_mul_f32 v{S2}, {hex(f2u(1/512))}, v{S2}
    v_fma_f32 v{S2}, -v{S1}, v{S1}, v{S2}
    v_max_f32 v{S2}, 0, v{S2}
    v_cvt_pk_bf16_f32 v{S1+2}, v{S1}, v{S2}
    v_lshlrev_b32 v{S1}, 16, v{S1+2}
    v_and_b32 v{S2}, s{sMask}, v{S1+2}
    v_add_f32 v{S2}, {hex(f2u(1e-5))}, v{S2}
    v_cvt_pk_bf16_f32 v{S2}, v{S2}, v{S2}
    v_and_b32 v{S2}, s{sMask}, v{S2}
    v_sqrt_f32 v{S2}, v{S2}
    s_nop 0
    v_cvt_pk_bf16_f32 v{S2}, v{S2}, v{S2}
    v_and_b32 v{S2}, s{sMask}, v{S2}
    v_rcp_f32 v{vR}, v{S2}
    s_nop 0
    v_mul_f32 v{vC}, -v{S1}, v{vR}
    """)

    def norm_frag(f):
        out = []
        for r in range(4):
            x = vX + 4 * f + r
            tt = vTmp + 2 * r
            out.append(f"v_lshlrev_b32 v{tt}, 16, v{x}")
            out.append(f"v_and_b32 v{tt+1}, s{sMask}, v{x}")
        for r in range(4):
            tt = vTmp + 2 * r
            out.append(f"v_fma_f32 v{tt}, v{tt}, v{vR}, v{vC}")
            out.append(f"v_fma_f32 v{tt+1}, v{tt+1}, v{vR}, v{vC}")
        for r in range(4):
            x = vX + 4 * f + r
            tt = vTmp + 2 * r
            out.append(f"v_cvt_pk_bf16_f32 v{x}, v{tt}, v{tt+1}")
        return out

    for l in norm_frag(0):
        a(l)
    a(f"s_mul_i32 s{sHoff}, s{sRT}, 112")
    a(f"s_mul_i32 s{sTmp}, s{sCB}, 7")
    a(f"s_add_u32 s{sHoff}, s{sHoff}, s{sTmp}")
    a(f"s_lshl_b32 s{sHoff}, s{sHoff}, 10")
    a(f"s_add_u32 s{sHoff}, s{sHoff}, {WS_H}")
    a(f"s_add_u32 s{sHoff2}, s{sHoff}, 4096")
    a(f"v_lshrrev_b32 v{vT0}, 2, v{vLane}")
    a(f"v_lshlrev_b32 v{vT0}, 10, v{vT0}")
    a(f"v_and_b32 v{vT1}, 3, v{vLane}")
    a(f"v_lshl_add_u32 v{vT0}, v{vT1}, 4, v{vT0}")
    a(f"v_lshlrev_b32 v{vT1}, 3, v{vT1}")
    a(f"v_bfe_u32 v{vS}, v{vLane}, 2, 2")
    a(f"v_lshl_add_u32 v{vT1}, v{vS}, 6, v{vT1}")
    a(f"v_bfe_u32 v{vS}, v{vLane}, 4, 1")
    a(f"v_lshl_add_u32 v{vT1}, v{vS}, 5, v{vT1}")
    a(f"v_lshrrev_b32 v{vS}, 5, v{vLane}")
    a(f"v_lshl_add_u32 v{vT1}, v{vS}, 8, v{vT1}")
    a(f"s_lshl_b32 s{sTl}, s{sW}, 10")
    a(f"s_add_u32 s{sTl}, s{sTl}, {TSCR}")
    a(f"v_add_u32 v{vT1}, s{sTl}, v{vT1}")
    a(f"s_lshl_b32 s{sTbase}, s2, 3")
    a(f"s_add_u32 s{sTbase}, s{sTbase}, s{sW}")
    a(f"s_cmp_lt_u32 s{sTbase}, 256")
    a(f"s_mov_b32 s{SWS2}, s{SWS}")
    a(f"s_mov_b32 s{SWS2+1}, s{SWS+1}")
    a(f"s_cselect_b32 s{SWS2+2}, {WS_SIZE}, 0")
    a(f"s_mov_b32 s{SWS2+3}, 0x00020000")
    a(f"s_mov_b32 s48, s48") if False else None

    def t_loads(rr):
        o = []
        o.append(f"s_add_u32 s{sTmp2}, s{sTbase}, {rr*2048}")
        o.append(f"s_lshr_b32 s{sTmp3}, s{sTmp2}, 4")
        o.append(f"s_and_b32 s{sTmp2}, s{sTmp2}, 15")
        o.append(f"s_mul_i32 s{sTb}, s{sTmp2}, 144")
        o.append(f"s_add_u32 s{sTb}, s{sTb}, s{sTmp3}")
        o.append(f"s_lshl_b32 s{sTb}, s{sTb}, 10")
        o.append(f"s_add_u32 s{sTb}, s{sTb}, {WS_WF}")
        o.append(f"s_mov_b32 s{ST+2}, {512*1024}")
        o.append(f"s_cmp_lt_u32 s{sTmp3}, 112")
        o.append(f"s_cselect_b32 s{ST}, s50, s48")
        o.append(f"s_cselect_b32 s{ST+1}, s51, s49")
        o.append(f"s_cselect_b32 s{ST+2}, {1792*1024}, s{ST+2}")
        o.append(f"s_cselect_b32 s{sTmp}, 0, 112")
        o.append(f"s_and_b32 s{ST+1}, s{ST+1}, 0xffff")
        o.append(f"s_mov_b32 s{ST+3}, 0x00020000")
        o.append(f"s_sub_u32 s{sTmp3}, s{sTmp3}, s{sTmp}")
        o.append(f"s_lshl_b32 s{sTmp3}, s{sTmp3}, 14")
        o.append(f"s_mov_b32 m0, s{sTl}")
        o.append(f"s_lshl_b32 s{sTmp2}, s{sTmp2}, 6")
        o.append(f"s_add_u32 s{sTmp3}, s{sTmp3}, s{sTmp2}")
        o.append(f"buffer_load_dwordx4 v{vT0}, s[{ST}:{ST+3}], s{sTmp3} offen lds")
        return o

    def t_store(rr):
        sd = SWS2 if rr == 1 else SWS
        o = []
        o.append(f"ds_read_b64_tr_b16 v[{vS}:{vS+1}], v{vT1}")
        o.append(f"ds_read_b64_tr_b16 v[{vS+2}:{vS+3}], v{vT1} offset:512")
        o.append("s_waitcnt lgkmcnt(0)")
        o.append(f"buffer_store_dwordx4 v[{vS}:{vS+3}], v{vL16}, s[{sd}:{sd+3}], s{sTb} offen")
        return o

    def tile_kind(ch, t):
        if ch == 0:
            return ("q", "k", "v", "m0", "m1")[t]
        return f"m{2+t}"

    def reads(ch, n):
        out = []
        i = n % 2
        for t in range(5):
            kd = tile_kind(ch, t)
            pr = []
            for qq in range(2):
                dst = f"v[{vW+4*t+2*qq}:{vW+4*t+2*qq+1}]"
                if kd[0] == "m":
                    mt = int(kd[1])
                    off = (8 * i + 4 * qq) * 224 + mt * 32
                    pr.append(f"ds_read_b64_tr_b16 {dst}, v{vCM} offset:{off}")
                else:
                    seg = "qkv".index(kd)
                    off = seg * 2048 + (8 * i + 4 * qq) * 64
                    pr.append(f"ds_read_b64_tr_b16 {dst}, v{vCQ} offset:{off}")
            out.append(pr)
        return out

    def set_slot(s):
        return [f"v_add_u32 v{vCM}, {slot_addr(s)}, v{vRM}", f"v_add_u32 v{vCQ}, {slot_addr(s)}, v{vRQ}"]

    a(f"s_cmp_eq_u32 s{sCH}, 1")
    a(f"s_cbranch_scc1 {name}_main1")
    q_save = (q.n, dict(q.tags))
    for ch in range(2):
        q.n, q.tags = q_save[0], dict(q_save[1])
        if ch == 1:
            a.label(f"{name}_main1")
        a(f"s_waitcnt vmcnt({q.wait(('st', 0))})")
        a("s_barrier")
        stamp() if ch == 0 else None
        for l in set_slot(0):
            a(l)
        for pr in reads(ch, 0):
            for l in pr:
                a(l)
        for n in range(32):
            g, i = n // 2, n % 2
            pre, dmas = [], []
            if i == 1 and g + 1 < 16:
                pre.append(f"s_waitcnt vmcnt({q.wait(('st', g+1))})")
                pre.append("s_barrier")
                pre += set_slot(g + 1)
                if g >= 1 and g + 6 < 16:
                    dmas.append(g + 6)
            if n < 4:
                dmas.insert(0, 3 + n)
            if stamps and ch == 0 and n in (8, 16, 24):
                stamp()
            for l in pre:
                a(l)
            if n in (8, 16):
                for l in t_loads((n - 8) // 8):
                    a(l)
                q.issue("T")
            if n in (13, 21):
                a(f"s_waitcnt vmcnt({q.wait('T')})")
                for l in t_store((n - 13) // 8):
                    a(l)
                q.issue()
            fill = norm_frag(n + 1) if n + 1 < 32 else []
            nxt = reads(ch, n + 1) if n + 1 < 32 else None
            dgs = []
            for st in dmas:
                for gr in dma_stage(st):
                    dgs.append((st, gr))
            fi = 0
            for t in range(5):
                issued_next = t if nxt is not None else 0
                cnt = 2 * (4 - t) + 2 * issued_next
                a(f"s_waitcnt lgkmcnt({cnt})")
                X = f"v[{vX+4*n}:{vX+4*n+3}]"
                Wf = f"v[{vW+4*t}:{vW+4*t+3}]"
                acc = f"a[{aA+16*t}:{aA+16*t+15}]"
                cc = "0" if n == 0 else acc
                if tile_kind(ch, t) == "v":
                    a(f"v_mfma_f32_32x32x16_bf16 {acc}, {X}, {Wf}, {cc}")
                else:
                    a(f"v_mfma_f32_32x32x16_bf16 {acc}, {Wf}, {X}, {cc}")
                if nxt is not None:
                    for l in nxt[t]:
                        a(l)
                per = (len(dgs) + (5 - t) - 1) // (5 - t)
                for _ in range(per):
                    if dgs:
                        st, gr = dgs.pop(0)
                        for l in gr:
                            a(l)
                        q.issue(("st", st))
                tgt = min(len(fill), (len(fill) * (t + 1) + 3) // 4)
                while fi < tgt:
                    a(fill[fi]); fi += 1
        stamp() if ch == 0 else None
        E = vX
        kK1, kK2 = vTmp, vTmp + 1
        a(f"v_mov_b32 v{kK1}, {hex(f2u(-2*0.7978845608028654*1.4426950408889634))}")
        a(f"v_mov_b32 v{kK2}, {hex(f2u(-2*0.7978845608028654*1.4426950408889634*0.044715))}")
        a("s_nop 7")
        a("s_nop 3")

        def mlp_epi(t, mt, eb):
            G, U, X = eb, eb + 8, eb + 16
            rs = range(8)
            for r in rs:
                a(f"v_accvgpr_read_b32 v{G+r}, a{aA+16*t+r}")
            for r in rs:
                a(f"v_accvgpr_read_b32 v{U+r}, a{aA+16*t+8+r}")
            for r in rs:
                a(f"v_mul_f32 v{X+r}, v{G+r}, v{G+r}")
            for r in rs:
                a(f"v_fma_f32 v{X+r}, v{X+r}, v{kK2}, v{kK1}")
            for r in rs:
                a(f"v_mul_f32 v{X+r}, v{G+r}, v{X+r}")
            for r in rs:
                a(f"v_exp_f32 v{X+r}, v{X+r}")
            for r in rs:
                a(f"v_mul_f32 v{U+r}, v{G+r}, v{U+r}")
            for r in rs:
                a(f"v_add_f32 v{X+r}, 1.0, v{X+r}")
            for r in rs:
                a(f"v_rcp_f32 v{X+r}, v{X+r}")
            a("s_nop 0")
            for r in rs:
                a(f"v_mul_f32 v{U+r}, v{U+r}, v{X+r}")
            for r in range(4):
                a(f"v_cvt_pk_bf16_f32 v{G+r}, v{U+2*r}, v{U+2*r+1}")
            so, off = (sHoff, mt * 1024) if mt < 4 else (sHoff2, (mt - 4) * 1024)
            a(f"buffer_store_dwordx4 v[{G}:{G+3}], v{vL16}, s[{SWS}:{SWS+3}], s{so} offen offset:{off}")

        if ch == 0:
            mlp_epi(3, 0, E)
            mlp_epi(4, 1, E + 24)
            sQoff, sVoff = sTmp, sTmp2
            a(f"s_lshl_b32 s{sQoff}, s{sCB}, 7")
            a(f"s_add_u32 s{sQoff}, s{sQoff}, s{sRT}")
            a(f"s_lshl_b32 s{sQoff}, s{sQoff}, 10")
            a(f"s_add_u32 s{sVoff}, s{sQoff}, {WS_V}")
            a(f"s_add_u32 s{sTmp3}, s{sQoff}, 65536")
            a(f"s_add_u32 s{sTmp4}, s{sQoff}, {WS_K}")
            a(f"s_add_u32 s{sTb}, s{sQoff}, {WS_K+65536}")
            a(f"s_mov_b32 s{sTl}, {hex(f2u(QSCALE))}")
            for t in range(3):
                for half in range(2):
                    T = E + 48 + 12 * (2 * t + half)
                    for r in range(8):
                        a(f"v_accvgpr_read_b32 v{T+r}, a{aA+16*t+8*half+r}")
                    if t == 0:
                        for r in range(8):
                            a(f"v_mul_f32 v{T+r}, s{sTl}, v{T+r}")
                    P = T + 8
                    for r in range(4):
                        a(f"v_cvt_pk_bf16_f32 v{P+r}, v{T+2*r}, v{T+2*r+1}")
                    if t == 0:
                        so = sQoff if half == 0 else sTmp3
                        a(f"buffer_store_dwordx4 v[{P}:{P+3}], v{vL16}, s[{SWS}:{SWS+3}], s{so} offen")
                    elif t == 1:
                        so = sTmp4 if half == 0 else sTb
                        a(f"buffer_store_dwordx4 v[{P}:{P+3}], v{vL16}, s[{SWS}:{SWS+3}], s{so} offen")
                    else:
                        a(f"buffer_store_dwordx4 v[{P}:{P+3}], v{vVoff}, s[{SWS}:{SWS+3}], s{sVoff} offen offset:{half*512}")
        else:
            for t in range(5):
                mlp_epi(t, 2 + t, E + 24 * t)
        if stamps:
            if ch == 0:
                stamp()
                wg_end(a, SWS, 0, 4, 94)
                a("s_load_dwordx2 s[40:41], s[0:1], 64")
                a("s_waitcnt lgkmcnt(0)")
                a("s_mov_b32 s42, 256")
                a("s_mov_b32 s43, 0x00020000")
                a("s_cmp_lg_u32 s2, 0")
                a(f"s_cbranch_scc1 {name}_end")
                a("s_cmp_lg_u32 s3, 0")
                a(f"s_cbranch_scc1 {name}_end")
                a("v_mov_b32 v1, 0")
                for i_ in range(st_n[0]):
                    a(f"v_mov_b32 v2, s{76+2*i_}")
                    a(f"buffer_store_dword v2, v1, s[40:43], 0 offen offset:{4*i_}")
            else:
                wg_end(a, SWS, 0, 4, 94)
        if ch == 0:
            a("s_endpgm")
    a.label(f"{name}_end")
    a("s_endpgm")
    a.finish(name)
    desc = f"""
.amdhsa_kernel {name}
  .amdhsa_next_free_vgpr 256
  .amdhsa_next_free_sgpr 102
  .amdhsa_accum_offset 176
  .amdhsa_group_segment_fixed_size 0
  .amdhsa_kernarg_size 80
  .amdhsa_user_sgpr_count 2
  .amdhsa_user_sgpr_kernarg_segment_ptr 1
  .amdhsa_system_sgpr_workgroup_id_x 1
.end_amdhsa_kernel
"""
    return desc, K1B_LDS
```

```python
from asmlib import *
from k1 import WS_Q, WS_K, WS_V, WS_O, WS_G, WS_WF, WS_H, WS_SIZE, QSCALE, f2u, VQ

XPITCH = 1040
SLOT = 20736
UPO = 7296
QO = 14592
SLOT6 = 128 * XPITCH
DUMMY = SLOT6 + SLOT
EXCH = DUMMY + 1024
TSCR = 6 * SLOT
K1B_LDS = EXCH + 2048


def slot_addr(s):
    k = (s + 6) % 7
    return SLOT6 if k == 6 else k * SLOT


import os
def gen_k1b(a, name, stamps=False):
    sW, sRB, sCB, sRG, sCH, sRT = 3, 4, 5, 6, 7, 59
    SX, SWS, ST, SWS2 = 8, 12, 16, 20
    SD = 24
    sDl = 36
    sDs = 60
    sDst = 64
    sOnes, sMask = 67, 68
    sTmp, sTmp2, sTmp3, sTmp4 = 54, 55, 56, 57
    sHoff, sHoff2, sTb, sTbase, sTl = 70, 71, 72, 73, 74
    vLane, vL16, vXa, vVoff = 1, 2, 3, 4
    vD = 5
    vRM, vRQ = 8, 9
    vCM, vCQ = 10, 11
    vR, vC = 12, 13
    vTmp = 14
    vW = 22
    vX = 42
    vT0, vT1 = 170, 171
    vS = 172
    aA = 0

    st_n = [0]

    def stamp():
        if not stamps:
            return
        k = 76 + 2 * st_n[0]
        st_n[0] += 1
        a(f"s_memtime s[{k}:{k+1}]")
        a("s_waitcnt lgkmcnt(0)")

    q = VQ()
    a.raw(f".p2align 8\n.globl {name}\n.type {name},@function\n{name}:")
    a("s_cmp_ge_u32 s2, 256")
    a(f"s_cbranch_scc1 {name}_end")
    if stamps:
        wg_begin(a, 94)
    if os.environ.get("PF", "0") == "1":
        a("s_getpc_b64 s[98:99]")
        a.label(f"{name}_pf")
        a("v_lshlrev_b32 v3, 4, v0")
        for i in range(5):
            a(f"v_add_u32 v4, {i*8192}, v3")
            a.raw(f"    v_min_u32 v4, (k3_kernel_end - {name}_pf - 16), v4")
            a(f"global_load_dwordx4 v[{44+4*i}:{44+4*i+3}], v4, s[98:99]")
            q.issue()
    a("""
    s_load_dwordx4 s[40:43], s[0:1], 0
    s_load_dwordx4 s[44:47], s[0:1], 32
    s_load_dwordx2 s[48:49], s[0:1], 16
    s_load_dwordx2 s[50:51], s[0:1], 48
    s_load_dwordx2 s[52:53], s[0:1], 72
    v_lshrrev_b32 v2, 6, v0
    v_and_b32 v1, 63, v0
    s_nop 0
    v_readfirstlane_b32 s3, v2
    """)
    RM = os.environ.get("RMAP", "4")
    if RM == "4":
        a("""
    s_bfe_u32 s4, s2, 0x20001
    s_lshl_b32 s4, s4, 2
    s_lshr_b32 s5, s2, 6
    s_add_u32 s4, s4, s5
    s_and_b32 s5, s2, 1
    s_lshl_b32 s5, s5, 3
    s_bfe_u32 s6, s2, 0x30003
    s_add_u32 s5, s5, s6
    """)
    elif RM == "8":
        a("""
    s_bfe_u32 s4, s2, 0x10002
    s_lshl_b32 s4, s4, 3
    s_lshr_b32 s5, s2, 5
    s_add_u32 s4, s4, s5
    s_and_b32 s5, s2, 3
    s_lshl_b32 s5, s5, 2
    s_bfe_u32 s6, s2, 0x20003
    s_add_u32 s5, s5, s6
    """)
    else:
        a("""
    s_lshr_b32 s4, s2, 4
    s_and_b32 s5, s2, 15
    """)
    a("""
    s_and_b32 s6, s3, 3
    s_lshr_b32 s7, s3, 2
    """)
    a(f"s_mov_b32 s{sOnes}, 0x3f803f80")
    a(f"s_mov_b32 s{sMask}, 0xffff0000")
    a(f"s_lshl_b32 s{sRT}, s{sRB}, 2")
    a(f"s_add_u32 s{sRT}, s{sRT}, s{sRG}")
    a(f"v_lshlrev_b32 v{vL16}, 4, v{vLane}")
    t0, t1, t2, t3 = vTmp, vTmp + 1, vTmp + 2, vTmp + 3
    a(f"v_and_b32 v{t0}, 31, v{vLane}")
    a(f"v_lshrrev_b32 v{t1}, 5, v{vLane}")
    a(f"s_mul_i32 s{sTmp}, s{sRG}, {32*XPITCH}")
    a(f"v_mul_u32_u24 v{vXa}, {XPITCH}, v{t0}")
    a(f"v_lshl_add_u32 v{vXa}, v{t1}, 5, v{vXa}")
    a(f"v_add_u32 v{vXa}, s{sTmp}, v{vXa}")
    a(f"v_bfe_u32 v{t2}, v{vLane}, 4, 1")
    a(f"v_lshlrev_b32 v{vVoff}, 16, v{t2}")
    a(f"v_lshl_add_u32 v{vVoff}, v{t1}, 8, v{vVoff}")
    a(f"v_and_b32 v{t2}, 15, v{vLane}")
    a(f"v_lshl_add_u32 v{vVoff}, v{t2}, 4, v{vVoff}")
    a(f"v_bfe_u32 v{t2}, v{vLane}, 2, 2")
    a(f"v_lshl_add_u32 v{t2}, v{t1}, 4, v{t2}")
    a(f"v_and_b32 v{t3}, 3, v{vLane}")
    a(f"v_bfe_u32 v{t0}, v{vLane}, 4, 1")
    a(f"v_mul_u32_u24 v{vRM}, 224, v{t2}")
    a(f"v_lshl_add_u32 v{vRM}, v{t3}, 3, v{vRM}")
    a(f"v_mul_u32_u24 v{vRQ}, {UPO}, v{t0}")
    a(f"v_add_u32 v{vRM}, v{vRM}, v{vRQ}")
    a(f"v_lshlrev_b32 v{vRQ}, 6, v{t2}")
    a(f"v_lshl_add_u32 v{vRQ}, v{t3}, 3, v{vRQ}")
    a(f"v_lshl_add_u32 v{vRQ}, v{t0}, 5, v{vRQ}")
    a(f"v_add_u32 v{vRQ}, {QO}, v{vRQ}")
    a("s_waitcnt lgkmcnt(0)")

    def srd(d, lo, size):
        a(f"s_mov_b32 s{d}, s{lo}")
        a(f"s_and_b32 s{d+1}, s{lo+1}, 0xffff")
        a(f"s_mov_b32 s{d+2}, {size}")
        a(f"s_mov_b32 s{d+3}, 0x00020000")
    srd(SX, 40, 2048 * 1024)
    stamp()
    a(f"s_lshl_b32 s{sTmp}, s{sRB}, 17")
    a(f"s_lshl_b32 s{sTmp2}, s{sW}, 14")
    a(f"s_add_u32 s{sTmp}, s{sTmp}, s{sTmp2}")
    a(f"s_mul_i32 s{sTmp2}, s{sW}, {16*XPITCH}")
    for r in range(16):
        a(f"s_add_u32 m0, s{sTmp2}, {r*XPITCH}")
        a(f"s_add_u32 s{sTmp3}, s{sTmp}, {r*1024}")
        a(f"buffer_load_dwordx4 v{vL16}, s[{SX}:{SX+3}], s{sTmp3} offen lds")
        q.issue("x")
    srd(SWS, 52, WS_SIZE)

    for j in range(3):
        sP = sTmp
        a(f"s_add_u32 s{sP}, s{sW}, {8*j}")
        d = SD + 4 * j
        a(f"s_cmp_lt_u32 s{sP}, 7")
        a(f"s_cselect_b32 s{d}, s44, s46")
        a(f"s_cselect_b32 s{d+1}, s45, s47")
        a(f"s_cselect_b32 s{sTmp2}, 0, 7")
        a(f"s_cselect_b32 s{sTmp3}, 0, {UPO}")
        a(f"s_sub_u32 s{sTmp2}, s{sP}, s{sTmp2}")
        a(f"s_lshl_b32 s{sTmp4}, s{sTmp2}, 10")
        a(f"s_add_u32 s{sDl+j}, s{sTmp3}, s{sTmp4}")
        a(f"s_lshl_b32 s{sTmp2}, s{sTmp2}, 6")
        a(f"s_sub_u32 s{sTmp3}, s{sP}, 14")
        a(f"s_cmp_ge_u32 s{sP}, 14")
        a(f"s_cselect_b32 s{d}, s42, s{d}")
        a(f"s_cselect_b32 s{d+1}, s43, s{d+1}")
        a(f"s_and_b32 s{d+1}, s{d+1}, 0xffff")
        a(f"s_mov_b32 s{d+3}, 0x00020000")
        a(f"s_lshl_b32 s{sTmp4}, s{sTmp3}, 10")
        a(f"s_add_u32 s{sTmp4}, s{sTmp4}, {QO}")
        a(f"s_cmp_ge_u32 s{sP}, 14")
        a(f"s_cselect_b32 s{sDl+j}, s{sTmp4}, s{sDl+j}")
        a(f"s_cselect_b32 s{sDst+j}, {32*3072}, s98") if False else None
        a(f"s_mov_b32 s{sDst+j}, {32*3584}")
        a(f"s_cselect_b32 s{sTmp4}, 1, 0")
        a(f"s_cmp_eq_u32 s{sTmp4}, 1")
        a(f"s_cbranch_scc0 {name}_p{j}_mlp")
        a(f"s_mov_b32 s{sDst+j}, {32*3072}")
        a(f"s_mov_b32 s{d+2}, {512*3072}")
        a(f"s_and_b32 s{sTmp2}, s{sTmp3}, 1")
        a(f"s_lshl_b32 s{sTmp2}, s{sTmp2}, 4")
        a(f"v_lshrrev_b32 v{t0}, 2, v{vLane}")
        a(f"v_add_u32 v{t0}, s{sTmp2}, v{t0}")
        a(f"v_mul_u32_u24 v{vD+j}, 3072, v{t0}")
        a(f"v_and_b32 v{t0}, 3, v{vLane}")
        a(f"v_lshl_add_u32 v{vD+j}, v{t0}, 4, v{vD+j}")
        a(f"s_lshr_b32 s{sTmp2}, s{sTmp3}, 1")
        a(f"s_lshl_b32 s{sTmp2}, s{sTmp2}, 10")
        a(f"s_lshl_b32 s{sTmp4}, s{sCB}, 6")
        a(f"s_add_u32 s{sTmp2}, s{sTmp2}, s{sTmp4}")
        a(f"v_add_u32 v{vD+j}, s{sTmp2}, v{vD+j}")
        a(f"s_cmp_ge_u32 s{sP}, 20")
        a(f"s_cselect_b32 s{d+2}, 0, s{d+2}")
        a(f"s_branch {name}_p{j}_done")
        a.label(f"{name}_p{j}_mlp")
        a(f"s_mov_b32 s{d+2}, {512*3584}")
        a(f"v_add_u32 v{t0}, s{sTmp2}, v{vLane}")
        a(f"v_mul_u32_u24 v{t1}, 4682, v{t0}")
        a(f"v_lshrrev_b32 v{t1}, 16, v{t1}")
        a(f"v_mul_u32_u24 v{vD+j}, 14, v{t1}")
        a(f"v_sub_u32 v{t0}, v{t0}, v{vD+j}")
        a(f"v_mul_u32_u24 v{vD+j}, 3584, v{t1}")
        a(f"v_lshl_add_u32 v{vD+j}, v{t0}, 4, v{vD+j}")
        a(f"s_mul_i32 s{sTmp4}, s{sCB}, 224")
        a(f"v_add_u32 v{vD+j}, s{sTmp4}, v{vD+j}")
        a.label(f"{name}_p{j}_done")
        a(f"s_mov_b32 s{sDs+j}, 0")
    sDum = 75
    a(f"s_cmp_ge_u32 s{sW}, 4")
    a(f"s_cselect_b32 s{sDum}, 1, 0")

    def dma_stage(s):
        out = []
        base = slot_addr(s)
        for j in range(3):
            g = []
            if j < 2:
                g.append(f"s_add_u32 m0, s{sDl+j}, {base}")
            else:
                g.append(f"s_add_u32 s{sTmp4}, s{sDl+j}, {base}")
                g.append(f"s_cmp_eq_u32 s{sDum}, 1")
                g.append(f"s_cselect_b32 m0, {DUMMY}, s{sTmp4}")
            g.append("s_nop 0")
            g.append(f"buffer_load_dwordx4 v{vD+j}, s[{SD+4*j}:{SD+4*j+3}], s{sDs+j} offen lds")
            g.append(f"s_add_u32 s{sDs+j}, s{sDs+j}, s{sDst+j}")
            out.append(g)
        return out

    for g in dma_stage(0):
        for l in g:
            a(l)
    q.issue(("st", 0), 3)
    if os.environ.get("WPF", "0") == "1":
        SG, SU, SQ = 76 + 14, 16, 20
        for d, lo, size in ((16, 46, 512 * 3584), (20, 42, 512 * 3072), (44, 44, 512 * 3584)):
            a(f"s_mov_b32 s{d}, s{lo}")
            a(f"s_and_b32 s{d+1}, s{lo+1}, 0xffff")
            a(f"s_mov_b32 s{d+2}, {size}")
            a(f"s_mov_b32 s{d+3}, 0x00020000")
        NR = int(os.environ.get("WPFR", "128"))
        a(f"s_cmp_ge_u32 s{sW}, {NR//16}")
        a(f"s_cbranch_scc1 {name}_nopf")
        a(f"v_lshrrev_b32 v{t0}, 2, v{vLane}")
        a(f"v_mul_u32_u24 v{t1}, 3584, v{t0}")
        a(f"v_and_b32 v{t2}, 3, v{vLane}")
        a(f"v_lshl_add_u32 v{t1}, v{t2}, 6, v{t1}")
        a(f"s_mul_i32 s{sTmp}, s{sCB}, 224")
        a(f"s_mul_i32 s{sTmp2}, s{sW}, {16*3584}")
        a(f"s_add_u32 s{sTmp}, s{sTmp}, s{sTmp2}")
        a(f"s_add_u32 s{sTmp}, s{sTmp}, {32*3584}")
        a(f"buffer_load_dword v175, v{t1}, s[44:47], s{sTmp} offen")
        a(f"buffer_load_dword v175, v{t1}, s[16:19], s{sTmp} offen")
        a(f"v_and_b32 v{t0}, 15, v{vLane}")
        a(f"v_mul_u32_u24 v{t1}, 3072, v{t0}")
        a(f"v_lshrrev_b32 v{t2}, 4, v{vLane}")
        a(f"v_min_u32 v{t2}, 2, v{t2}")
        a(f"v_lshl_add_u32 v{t1}, v{t2}, 10, v{t1}")
        a(f"s_lshl_b32 s{sTmp}, s{sCB}, 6")
        a(f"s_mul_i32 s{sTmp2}, s{sW}, {16*3072}")
        a(f"s_add_u32 s{sTmp}, s{sTmp}, s{sTmp2}")
        a(f"s_add_u32 s{sTmp}, s{sTmp}, {32*3072}")
        a(f"buffer_load_dword v175, v{t1}, s[20:23], s{sTmp} offen")
        a.label(f"{name}_nopf")
        q.issue(None, 3)

    vOne = vW
    for r in range(4):
        a(f"v_mov_b32 v{vOne+r}, s{sOnes}")
    a(f"s_waitcnt vmcnt({q.wait('x')})")
    a("s_barrier")
    stamp()
    for f in range(32):
        a(f"ds_read_b128 v[{vX+4*f}:{vX+4*f+3}], v{vXa} offset:{(f//2)*64 + (f%2)*16}")
    S2 = vTmp
    a(f"s_cmp_eq_u32 s{sCH}, 1")
    a(f"s_cbranch_scc1 {name}_stat1")
    for chv in range(2):
        if chv == 1:
            a.label(f"{name}_stat1")
        a("s_waitcnt lgkmcnt(0)") if chv == 1 else a("s_waitcnt lgkmcnt(15)")
        for k, f in enumerate(range(16 * chv, 16 * chv + 16)):
            if chv == 0 and k > 0:
                a(f"s_waitcnt lgkmcnt({max(0, 15 - k)})") if False else None
            cc = "0" if k == 0 else f"a[{aA}:{aA+15}]"
            if chv == 0 and k == 0:
                a("s_waitcnt lgkmcnt(0)")
            a(f"v_mfma_f32_32x32x16_bf16 a[{aA}:{aA+15}], v[{vOne}:{vOne+3}], v[{vX+4*f}:{vX+4*f+3}], {cc}")
            for r in range(4 * f, 4 * f + 4):
                kk = r % 4
                c2 = "0" if k == 0 else f"v{S2+kk}"
                a(f"v_dot2_f32_bf16 v{S2+kk}, v{vX+r}, v{vX+r}, {c2}")
        if chv == 0:
            a(f"s_branch {name}_stat_done")
    a.label(f"{name}_stat_done")
    a(f"s_lshl_b32 s{sTmp}, s{sRG}, 9")
    a(f"s_lshl_b32 s{sTmp2}, s{sCH}, 8")
    a(f"s_add_u32 s{sTmp3}, s{sTmp}, s{sTmp2}")
    a(f"s_xor_b32 s{sTmp2}, s{sTmp2}, 256")
    a(f"s_add_u32 s{sTmp}, s{sTmp}, s{sTmp2}")
    a(f"v_and_b32 v{vS}, 31, v{vLane}")
    a(f"v_lshlrev_b32 v{vS}, 3, v{vS}")
    a(f"v_add_u32 v{vS}, {EXCH}, v{vS}")
    a(f"v_add_u32 v{vS+1}, s{sTmp}, v{vS}")
    a(f"v_add_u32 v{vS}, s{sTmp3}, v{vS}")
    a(f"""
    s_nop 3
    v_add_f32 v{S2}, v{S2}, v{S2+1}
    v_add_f32 v{S2+2}, v{S2+2}, v{S2+3}
    s_nop 0
    v_add_f32 v{S2}, v{S2}, v{S2+2}
    s_nop 0
    v_mov_b32 v{S2+1}, v{S2}
    s_nop 1
    v_permlane32_swap_b32 v{S2}, v{S2+1}
    s_nop 1
    v_add_f32 v{S2+1}, v{S2}, v{S2+1}
    v_accvgpr_read_b32 v{S2}, a{aA}
    s_nop 0
    ds_write_b64 v{vS}, v[{S2}:{S2+1}]
    s_waitcnt lgkmcnt(0)
    s_barrier
    ds_read_b64 v[{S2+2}:{S2+3}], v{vS+1}
    """)
    for st in (1, 2):
        for g in dma_stage(st):
            for l in g:
                a(l)
        q.issue(("st", st), 3)
    S1 = S2 + 4
    a(f"""
    s_waitcnt lgkmcnt(0)
    v_add_f32 v{S1}, v{S2}, v{S2+2}
    v_add_f32 v{S2}, v{S2+1}, v{S2+3}
    v_mul_f32 v{S1}, {hex(f2u(1/512))}, v{S1}
    v_mul_f32 v{S2}, {hex(f2u(1/512))}, v{S2}
    v_fma_f32 v{S2}, -v{S1}, v{S1}, v{S2}
    v_max_f32 v{S2}, 0, v{S2}
    v_cvt_pk_bf16_f32 v{S1+2}, v{S1}, v{S2}
    v_lshlrev_b32 v{S1}, 16, v{S1+2}
    v_and_b32 v{S2}, s{sMask}, v{S1+2}
    v_add_f32 v{S2}, {hex(f2u(1e-5))}, v{S2}
    v_cvt_pk_bf16_f32 v{S2}, v{S2}, v{S2}
    v_and_b32 v{S2}, s{sMask}, v{S2}
    v_sqrt_f32 v{S2}, v{S2}
    s_nop 0
    v_cvt_pk_bf16_f32 v{S2}, v{S2}, v{S2}
    v_and_b32 v{S2}, s{sMask}, v{S2}
    v_rcp_f32 v{vR}, v{S2}
    s_nop 0
    v_mul_f32 v{vC}, -v{S1}, v{vR}
    """)

    def norm_frag(f):
        out = []
        for r in range(4):
            x = vX + 4 * f + r
            tt = vTmp + 2 * r
            out.append(f"v_lshlrev_b32 v{tt}, 16, v{x}")
            out.append(f"v_and_b32 v{tt+1}, s{sMask}, v{x}")
        for r in range(4):
            tt = vTmp + 2 * r
            out.append(f"v_fma_f32 v{tt}, v{tt}, v{vR}, v{vC}")
            out.append(f"v_fma_f32 v{tt+1}, v{tt+1}, v{vR}, v{vC}")
        for r in range(4):
            x = vX + 4 * f + r
            tt = vTmp + 2 * r
            out.append(f"v_cvt_pk_bf16_f32 v{x}, v{tt}, v{tt+1}")
        return out

    for l in norm_frag(0):
        a(l)
    a(f"s_mul_i32 s{sHoff}, s{sRT}, 112")
    a(f"s_mul_i32 s{sTmp}, s{sCB}, 7")
    a(f"s_add_u32 s{sHoff}, s{sHoff}, s{sTmp}")
    a(f"s_lshl_b32 s{sHoff}, s{sHoff}, 10")
    a(f"s_add_u32 s{sHoff}, s{sHoff}, {WS_H}")
    a(f"s_add_u32 s{sHoff2}, s{sHoff}, 4096")
    a(f"v_lshrrev_b32 v{vT0}, 2, v{vLane}")
    a(f"v_lshlrev_b32 v{vT0}, 10, v{vT0}")
    a(f"v_and_b32 v{vT1}, 3, v{vLane}")
    a(f"v_lshl_add_u32 v{vT0}, v{vT1}, 4, v{vT0}")
    a(f"v_lshlrev_b32 v{vT1}, 3, v{vT1}")
    a(f"v_bfe_u32 v{vS}, v{vLane}, 2, 2")
    a(f"v_lshl_add_u32 v{vT1}, v{vS}, 6, v{vT1}")
    a(f"v_bfe_u32 v{vS}, v{vLane}, 4, 1")
    a(f"v_lshl_add_u32 v{vT1}, v{vS}, 5, v{vT1}")
    a(f"v_lshrrev_b32 v{vS}, 5, v{vLane}")
    a(f"v_lshl_add_u32 v{vT1}, v{vS}, 8, v{vT1}")
    a(f"s_lshl_b32 s{sTl}, s{sW}, 10")
    a(f"s_add_u32 s{sTl}, s{sTl}, {TSCR}")
    a(f"v_add_u32 v{vT1}, s{sTl}, v{vT1}")
    a(f"s_lshl_b32 s{sTbase}, s2, 3")
    a(f"s_add_u32 s{sTbase}, s{sTbase}, s{sW}")
    a(f"s_cmp_lt_u32 s{sTbase}, 256")
    a(f"s_mov_b32 s{SWS2}, s{SWS}")
    a(f"s_mov_b32 s{SWS2+1}, s{SWS+1}")
    a(f"s_cselect_b32 s{SWS2+2}, {WS_SIZE}, 0")
    a(f"s_mov_b32 s{SWS2+3}, 0x00020000")
    a(f"s_mov_b32 s48, s48") if False else None

    def t_loads(rr):
        o = []
        o.append(f"s_add_u32 s{sTmp2}, s{sTbase}, {rr*2048}")
        o.append(f"s_lshr_b32 s{sTmp3}, s{sTmp2}, 4")
        o.append(f"s_and_b32 s{sTmp2}, s{sTmp2}, 15")
        o.append(f"s_mul_i32 s{sTb}, s{sTmp2}, 144")
        o.append(f"s_add_u32 s{sTb}, s{sTb}, s{sTmp3}")
        o.append(f"s_lshl_b32 s{sTb}, s{sTb}, 10")
        o.append(f"s_add_u32 s{sTb}, s{sTb}, {WS_WF}")
        o.append(f"s_mov_b32 s{ST+2}, {512*1024}")
        o.append(f"s_cmp_lt_u32 s{sTmp3}, 112")
        o.append(f"s_cselect_b32 s{ST}, s50, s48")
        o.append(f"s_cselect_b32 s{ST+1}, s51, s49")
        o.append(f"s_cselect_b32 s{ST+2}, {1792*1024}, s{ST+2}")
        o.append(f"s_cselect_b32 s{sTmp}, 0, 112")
        o.append(f"s_and_b32 s{ST+1}, s{ST+1}, 0xffff")
        o.append(f"s_mov_b32 s{ST+3}, 0x00020000")
        o.append(f"s_sub_u32 s{sTmp3}, s{sTmp3}, s{sTmp}")
        o.append(f"s_lshl_b32 s{sTmp3}, s{sTmp3}, 14")
        o.append(f"s_mov_b32 m0, s{sTl}")
        o.append(f"s_lshl_b32 s{sTmp2}, s{sTmp2}, 6")
        o.append(f"s_add_u32 s{sTmp3}, s{sTmp3}, s{sTmp2}")
        o.append(f"buffer_load_dwordx4 v{vT0}, s[{ST}:{ST+3}], s{sTmp3} offen lds")
        return o

    def t_store(rr):
        sd = SWS2 if rr == 1 else SWS
        o = []
        o.append(f"ds_read_b64_tr_b16 v[{vS}:{vS+1}], v{vT1}")
        o.append(f"ds_read_b64_tr_b16 v[{vS+2}:{vS+3}], v{vT1} offset:512")
        o.append("s_waitcnt lgkmcnt(0)")
        o.append(f"buffer_store_dwordx4 v[{vS}:{vS+3}], v{vL16}, s[{sd}:{sd+3}], s{sTb} offen")
        return o

    def tile_kind(ch, t):
        if ch == 0:
            return ("q", "k", "v", "m0", "m1")[t]
        return f"m{2+t}"

    def reads(ch, n):
        out = []
        i = n % 2
        for t in range(5):
            kd = tile_kind(ch, t)
            pr = []
            for qq in range(2):
                dst = f"v[{vW+4*t+2*qq}:{vW+4*t+2*qq+1}]"
                if kd[0] == "m":
                    mt = int(kd[1])
                    off = (8 * i + 4 * qq) * 224 + mt * 32
                    pr.append(f"ds_read_b64_tr_b16 {dst}, v{vCM} offset:{off}")
                else:
                    seg = "qkv".index(kd)
                    off = seg * 2048 + (8 * i + 4 * qq) * 64
                    pr.append(f"ds_read_b64_tr_b16 {dst}, v{vCQ} offset:{off}")
            out.append(pr)
        return out

    def set_slot(s):
        return [f"v_add_u32 v{vCM}, {slot_addr(s)}, v{vRM}", f"v_add_u32 v{vCQ}, {slot_addr(s)}, v{vRQ}"]

    a(f"s_cmp_eq_u32 s{sCH}, 1")
    a(f"s_cbranch_scc1 {name}_main1")
    q_save = (q.n, dict(q.tags))
    for ch in range(2):
        q.n, q.tags = q_save[0], dict(q_save[1])
        if ch == 1:
            a.label(f"{name}_main1")
        a(f"s_waitcnt vmcnt({q.wait(('st', 0))})")
        a("s_barrier")
        stamp() if ch == 0 else None
        for l in set_slot(0):
            a(l)
        for pr in reads(ch, 0):
            for l in pr:
                a(l)
        for n in range(32):
            g, i = n // 2, n % 2
            pre, dmas = [], []
            if i == 1 and g + 1 < 16:
                pre.append(f"s_waitcnt vmcnt({q.wait(('st', g+1))})")
                pre.append("s_barrier")
                pre += set_slot(g + 1)
                if g >= 1 and g + 6 < 16:
                    dmas.append(g + 6)
            if n < 4:
                dmas.insert(0, 3 + n)
            if stamps and ch == 0 and n in (8, 16, 24):
                stamp()
            for l in pre:
                a(l)
            if n in (8, 16):
                for l in t_loads((n - 8) // 8):
                    a(l)
                q.issue("T")
            if n in (13, 21):
                a(f"s_waitcnt vmcnt({q.wait('T')})")
                for l in t_store((n - 13) // 8):
                    a(l)
                q.issue()
            fill = norm_frag(n + 1) if n + 1 < 32 else []
            nxt = reads(ch, n + 1) if n + 1 < 32 else None
            dgs = []
            for st in dmas:
                for gr in dma_stage(st):
                    dgs.append((st, gr))
            fi = 0
            for t in range(5):
                issued_next = t if nxt is not None else 0
                cnt = 2 * (4 - t) + 2 * issued_next
                a(f"s_waitcnt lgkmcnt({cnt})")
                X = f"v[{vX+4*n}:{vX+4*n+3}]"
                Wf = f"v[{vW+4*t}:{vW+4*t+3}]"
                acc = f"a[{aA+16*t}:{aA+16*t+15}]"
                cc = "0" if n == 0 else acc
                if tile_kind(ch, t) == "v":
                    a(f"v_mfma_f32_32x32x16_bf16 {acc}, {X}, {Wf}, {cc}")
                else:
                    a(f"v_mfma_f32_32x32x16_bf16 {acc}, {Wf}, {X}, {cc}")
                if nxt is not None:
                    for l in nxt[t]:
                        a(l)
                per = (len(dgs) + (5 - t) - 1) // (5 - t)
                for _ in range(per):
                    if dgs:
                        st, gr = dgs.pop(0)
                        for l in gr:
                            a(l)
                        q.issue(("st", st))
                tgt = min(len(fill), (len(fill) * (t + 1) + 3) // 4)
                while fi < tgt:
                    a(fill[fi]); fi += 1
        stamp() if ch == 0 else None
        E = vX
        kK1, kK2 = vTmp, vTmp + 1
        a(f"v_mov_b32 v{kK1}, {hex(f2u(-2*0.7978845608028654*1.4426950408889634))}")
        a(f"v_mov_b32 v{kK2}, {hex(f2u(-2*0.7978845608028654*1.4426950408889634*0.044715))}")
        a("s_nop 7")
        a("s_nop 3")

        def mlp_epi(t, mt, eb):
            G, U, X = eb, eb + 8, eb + 16
            rs = range(8)
            for r in rs:
                a(f"v_accvgpr_read_b32 v{G+r}, a{aA+16*t+r}")
            for r in rs:
                a(f"v_accvgpr_read_b32 v{U+r}, a{aA+16*t+8+r}")
            for r in rs:
                a(f"v_mul_f32 v{X+r}, v{G+r}, v{G+r}")
            for r in rs:
                a(f"v_fma_f32 v{X+r}, v{X+r}, v{kK2}, v{kK1}")
            for r in rs:
                a(f"v_mul_f32 v{X+r}, v{G+r}, v{X+r}")
            for r in rs:
                a(f"v_exp_f32 v{X+r}, v{X+r}")
            for r in rs:
                a(f"v_mul_f32 v{U+r}, v{G+r}, v{U+r}")
            for r in rs:
                a(f"v_add_f32 v{X+r}, 1.0, v{X+r}")
            for r in rs:
                a(f"v_rcp_f32 v{X+r}, v{X+r}")
            a("s_nop 0")
            for r in rs:
                a(f"v_mul_f32 v{U+r}, v{U+r}, v{X+r}")
            for r in range(4):
                a(f"v_cvt_pk_bf16_f32 v{G+r}, v{U+2*r}, v{U+2*r+1}")
            so, off = (sHoff, mt * 1024) if mt < 4 else (sHoff2, (mt - 4) * 1024)
            a(f"buffer_store_dwordx4 v[{G}:{G+3}], v{vL16}, s[{SWS}:{SWS+3}], s{so} offen offset:{off}")

        if ch == 0:
            mlp_epi(3, 0, E)
            mlp_epi(4, 1, E + 24)
            sQoff, sVoff = sTmp, sTmp2
            a(f"s_lshl_b32 s{sQoff}, s{sCB}, 7")
            a(f"s_add_u32 s{sQoff}, s{sQoff}, s{sRT}")
            a(f"s_lshl_b32 s{sQoff}, s{sQoff}, 10")
            a(f"s_add_u32 s{sVoff}, s{sQoff}, {WS_V}")
            a(f"s_add_u32 s{sTmp3}, s{sQoff}, 65536")
            a(f"s_add_u32 s{sTmp4}, s{sQoff}, {WS_K}")
            a(f"s_add_u32 s{sTb}, s{sQoff}, {WS_K+65536}")
            a(f"s_mov_b32 s{sTl}, {hex(f2u(QSCALE))}")
            for t in range(3):
                for half in range(2):
                    T = E + 48 + 12 * (2 * t + half)
                    for r in range(8):
                        a(f"v_accvgpr_read_b32 v{T+r}, a{aA+16*t+8*half+r}")
                    if t == 0:
                        for r in range(8):
                            a(f"v_mul_f32 v{T+r}, s{sTl}, v{T+r}")
                    P = T + 8
                    for r in range(4):
                        a(f"v_cvt_pk_bf16_f32 v{P+r}, v{T+2*r}, v{T+2*r+1}")
                    if t == 0:
                        so = sQoff if half == 0 else sTmp3
                        a(f"buffer_store_dwordx4 v[{P}:{P+3}], v{vL16}, s[{SWS}:{SWS+3}], s{so} offen")
                    elif t == 1:
                        so = sTmp4 if half == 0 else sTb
                        a(f"buffer_store_dwordx4 v[{P}:{P+3}], v{vL16}, s[{SWS}:{SWS+3}], s{so} offen")
                    else:
                        a(f"buffer_store_dwordx4 v[{P}:{P+3}], v{vVoff}, s[{SWS}:{SWS+3}], s{sVoff} offen offset:{half*512}")
        else:
            for t in range(5):
                mlp_epi(t, 2 + t, E + 24 * t)
        if stamps:
            if ch == 0:
                stamp()
                wg_end(a, SWS, 0, 4, 94)
                a("s_load_dwordx2 s[40:41], s[0:1], 64")
                a("s_waitcnt lgkmcnt(0)")
                a("s_mov_b32 s42, 256")
                a("s_mov_b32 s43, 0x00020000")
                a("s_cmp_lg_u32 s2, 0")
                a(f"s_cbranch_scc1 {name}_end")
                a("s_cmp_lg_u32 s3, 0")
                a(f"s_cbranch_scc1 {name}_end")
                a("v_mov_b32 v1, 0")
                for i_ in range(st_n[0]):
                    a(f"v_mov_b32 v2, s{76+2*i_}")
                    a(f"buffer_store_dword v2, v1, s[40:43], 0 offen offset:{4*i_}")
            else:
                wg_end(a, SWS, 0, 4, 94)
        if ch == 0:
            a("s_endpgm")
    a.label(f"{name}_end")
    a("s_endpgm")
    a.finish(name)
    desc = f"""
.amdhsa_kernel {name}
  .amdhsa_next_free_vgpr 256
  .amdhsa_next_free_sgpr 102
  .amdhsa_accum_offset 176
  .amdhsa_group_segment_fixed_size 0
  .amdhsa_kernarg_size 80
  .amdhsa_user_sgpr_count 2
  .amdhsa_user_sgpr_kernarg_segment_ptr 1
  .amdhsa_system_sgpr_workgroup_id_x 1
.end_amdhsa_kernel
"""
    return desc, K1B_LDS
```
